```python
import torch

def _softmax(x, axis=-1):
    return torch.softmax(x, dim=axis)
def _gelu(x):
    return torch.nn.functional.gelu(x, approximate="tanh")
def _silu(x):
    return torch.nn.functional.silu(x)
def _sigmoid(x):
    return torch.sigmoid(x)
def _layernorm(x, axis=-1, eps=1e-5):
    m = x.mean(dim=axis, keepdim=True)
    v = x.var(dim=axis, keepdim=True, unbiased=False)
    return (x - m) / torch.sqrt(v + eps)
def _scatter_add(tgt, idx, src, axis=0):
    return tgt.clone().index_add_(axis, idx, src)
def _segment_sum(src, seg, n):
    out = torch.zeros((n,) + src.shape[1:], dtype=src.dtype)
    return out.index_add_(0, seg, src)
def _pad(x, pw):
    flat = tuple(v for pair in reversed(pw) for v in pair)
    return torch.nn.functional.pad(x, flat)

kernel_name = 'recurrent_scan__compressed_kv_cla__geglu_ffn__decode'

def setup_inputs():

    _w = (lambda a: (lambda t: t.to(torch.bfloat16) if t.is_floating_point() else t)(torch.as_tensor(a)))
    def _A_setup():
        B, H, Sq, Sk, D, M = 1, 32, 1, 8192, 128, 640
        Dc = 4 * D
        return {
            "x": _w((lambda *s: torch.randn(*s, dtype=torch.bfloat16) * 0.05)(B, Sq, M)),
            "c_kv": _w((lambda *s: torch.randn(*s, dtype=torch.bfloat16) * 0.8)(B, Sk, Dc)),
            "w_q": _w((lambda *s: torch.randn(*s, dtype=torch.bfloat16) * 1.6)(M, H, D) * (M ** -0.5)),
            "w_uk": _w((lambda *s: torch.randn(*s, dtype=torch.bfloat16) * 1.6)(Dc, H, D) * (Dc ** -0.5)),
            "w_uv": _w((lambda *s: torch.randn(*s, dtype=torch.bfloat16) * 0.8)(Dc, H, D) * (Dc ** -0.5)),
            "w_o": _w((lambda *s: torch.randn(*s, dtype=torch.bfloat16) * 0.8)(H, D, M) * ((H * D) ** -0.5)),
        }
    _A_in = _A_setup()

    def _B_setup():
        B, S, D, F = 1, 1, 640, 1728
        return {
            "x": _w((lambda *s: torch.randn(*s, dtype=torch.bfloat16) * 0.05)(B, S, D)),
            "w_gate": _w((lambda *s: torch.randn(*s, dtype=torch.bfloat16) * 0.2)(D, F)),
            "w_up": _w((lambda *s: torch.randn(*s, dtype=torch.bfloat16) * 0.2)(D, F)),
            "w_down": _w((lambda *s: torch.randn(*s, dtype=torch.bfloat16) * 0.2)(F, D)),
        }
    _B_in = _B_setup()

    return {
        "A_x": _A_in["x"],
        "A_c_kv": _A_in["c_kv"],
        "A_w_q": _A_in["w_q"],
        "A_w_uk": _A_in["w_uk"],
        "A_w_uv": _A_in["w_uv"],
        "A_w_o": _A_in["w_o"],
        "B_x": _B_in["x"],
        "B_w_gate": _B_in["w_gate"],
        "B_w_up": _B_in["w_up"],
        "B_w_down": _B_in["w_down"],
    }

def reference(A_x, A_c_kv, A_w_q, A_w_uk, A_w_uv, A_w_o, B_x, B_w_gate, B_w_up, B_w_down):
    def _A_ref(x, c_kv, w_q, w_uk, w_uv, w_o):
        B, Sq, M = x.shape[0], x.shape[1], x.shape[2]
        Sk = c_kv.shape[1]
        H, D = w_q.shape[1], w_q.shape[2]
        q = torch.einsum("bqm,mhd->bhqd", x, w_q)
        k = torch.einsum("bkc,chd->bhkd", c_kv, w_uk)
        v = torch.einsum("bkc,chd->bhkd", c_kv, w_uv)
        scores = torch.einsum("bhqd,bhkd->bhqk", q, k) * (D ** -0.5)
        off = Sk - Sq
        qi = torch.arange(Sq)[:, None]
        kj = torch.arange(Sk)[None, :]
        cmask = kj <= (qi + off)
        scores = torch.where(cmask[None, None], scores, -1e9)
        p = _softmax(scores, axis=-1)
        ctx = torch.einsum("bhqk,bhkd->bhqd", p, v)
        return torch.einsum("bhqd,hdm->bqm", ctx, w_o)

    def _B_ref(x, w_gate, w_up, w_down):
        return (_gelu(x @ w_gate) * (x @ w_up)) @ w_down

    x = A_x
    xn = _layernorm(x, axis=-1)
    s = _A_ref(xn, A_c_kv, A_w_q, A_w_uk, A_w_uv, A_w_o)
    g = _silu(_B_ref(xn, B_w_gate, B_w_up, B_w_down))
    return x + s * g
```

```python
class Asm:
    def __init__(self):
        self.lines = []
    def __call__(self, s=""):
        for ln in s.split("\n"):
            self.lines.append(ln if ln.strip().endswith(":") or ln.startswith(".") or ln.startswith(";") else "    " + ln.strip())
    def label(self, name):
        self.lines.append(name + ":")
    def text(self):
        return "\n".join(self.lines) + "\n"

def vr(base, n=1):
    return f"v{base}" if n == 1 else f"v[{base}:{base+n-1}]"
def ar(base, n=1):
    return f"a{base}" if n == 1 else f"a[{base}:{base+n-1}]"
def sr(base, n=1):
    return f"s{base}" if n == 1 else f"s[{base}:{base+n-1}]"

def f32bits(x):
    import struct
    return "0x%08x" % struct.unpack("<I", struct.pack("<f", x))[0]

KA = dict(x=0, ckv=8, wq=16, wuk=24, wuv=32, wo=40, bx=48, wg=56, wu=64, wd=72, out=80, dbg=88, ws=96)
SZ = dict(x=1280, ckv=8192*1024, wq=640*8192, wuk=512*8192, wuv=512*8192, wo=4096*1280, bx=1280,
          wg=640*3456, wu=640*3456, wd=1728*1280, out=1280, dbg=256, ws=268435456)

def srd(a, dst, ptr, size):
    if dst != ptr:
        a(f"s_mov_b32 s{dst}, s{ptr}")
        a(f"s_mov_b32 s{dst+1}, s{ptr+1}")
    a(f"s_mov_b32 s{dst+2}, {hex(size)}")
    a(f"s_mov_b32 s{dst+3}, 0x20000")

def load_srd(a, dst, name):
    a(f"s_load_dwordx2 s[{dst}:{dst+1}], s[0:1], {KA[name]}")
    a(f"s_mov_b32 s{dst+2}, {hex(SZ[name])}")
    a(f"s_mov_b32 s{dst+3}, 0x20000")

def wave_allreduce(a, op, v, t):
    for ror in (8, 4, 2, 1):
        a("s_nop 1")
        a(f"{op}_dpp v{v}, v{v}, v{v} row_ror:{ror} row_mask:0xf bank_mask:0xf")
    cross_rows(a, op, v, t)

def cross_rows(a, op, v, t):
    a(f"v_mov_b32 v{t}, v{v}")
    a("s_nop 1")
    a(f"v_permlane16_swap_b32 v{v}, v{t}")
    a(f"{op} v{v}, v{v}, v{t}")
    a(f"v_mov_b32 v{t}, v{v}")
    a("s_nop 1")
    a(f"v_permlane32_swap_b32 v{v}, v{t}")
    a(f"{op} v{v}, v{v}, v{t}")

def kernel_desc(name, vgpr, accum, sgpr=96):
    return f""".amdhsa_kernel {name}
  .amdhsa_next_free_vgpr {vgpr}
  .amdhsa_next_free_sgpr {sgpr}
  .amdhsa_accum_offset {accum}
  .amdhsa_group_segment_fixed_size 0
  .amdhsa_kernarg_size 104
  .amdhsa_user_sgpr_count 2
  .amdhsa_user_sgpr_kernarg_segment_ptr 1
  .amdhsa_system_sgpr_workgroup_id_x 1
.end_amdhsa_kernel
"""
```

```python
import sys, math
sys.path.insert(0, "work")
from asmlib import *

NT = sys.argv[2] if len(sys.argv) > 2 else ""
QP = 0x000000
GP = 0x010000
QAF = 0x020000
ML = 0x030000
YP = 0x040000
SP = 0x0A0000
OP = 0x100000

L, I, G = 1, 2, 3
MK = 4
WV = 3

def prologue(a, nwg, end):
    a(f"s_cmp_ge_u32 s2, {nwg}")
    a(f"s_cbranch_scc1 {end}")
    a(f"v_and_b32 v{L}, 63, v0")
    a(f"v_lshrrev_b32 v{I}, 6, v0")
    a("s_nop 0")
    a(f"v_readfirstlane_b32 s{WV}, v{I}")
    a(f"v_and_b32 v{I}, 15, v{L}")
    a(f"v_lshrrev_b32 v{G}, 4, v{L}")

def masks(a, t0, t1):
    a(f"v_and_b32 v{t0}, 1, v{I}")
    a(f"v_lshlrev_b32 v{t0}, 4, v{t0}")
    a(f"v_mov_b32 v{t1}, 0xffff")
    a(f"v_lshlrev_b32 v{t0}, v{t0}, v{t1}")
    a(f"v_bfe_u32 v{t1}, v{I}, 1, 2")
    for r in range(4):
        a(f"v_cmp_eq_u32 vcc, {r}, v{t1}")
        a("s_nop 1")
        a(f"v_cndmask_b32 v{MK+r}, 0, v{t0}, vcc")

def selA(a, dst, dup):
    for r in range(4):
        a(f"v_and_b32 v{dst+r}, v{dup}, v{MK+r}")

def bfround(a, v):
    a(f"v_cvt_pk_bf16_f32 v{v}, v{v}, v{v}")
    a(f"v_and_b32 v{v}, 0xffff0000, v{v}")

def ln_issue(a, sx, t, raw):
    a(f"v_mul_u32_u24 v{t}, 20, v{L}")
    a(f"buffer_load_dwordx4 v[{raw}:{raw+3}], v{t}, s[{sx}:{sx+3}], 0 offen")
    a(f"buffer_load_dword v{raw+4}, v{t}, s[{sx}:{sx+3}], 0 offen offset:16")

def ln_compute(a, raw, u, t, ldsbase):
    for k in range(5):
        a(f"v_lshlrev_b32 v{u+2*k}, 16, v{raw+k}")
        a(f"v_and_b32 v{u+2*k+1}, 0xffff0000, v{raw+k}")
    mean, var, tmp, sd, rc, e = t, t+1, t+2, t+3, t+4, t+5
    a(f"v_add_f32 v{mean}, v{u}, v{u+1}")
    for k in range(2, 10):
        a(f"v_add_f32 v{mean}, v{mean}, v{u+k}")
    wave_allreduce(a, "v_add_f32", mean, tmp)
    a(f"v_mul_f32 v{mean}, {f32bits(1/640)}, v{mean}")
    a(f"v_mov_b32 v{var}, 0")
    for k in range(10):
        a(f"v_sub_f32 v{tmp}, v{u+k}, v{mean}")
        a(f"v_fmac_f32 v{var}, v{tmp}, v{tmp}")
    wave_allreduce(a, "v_add_f32", var, tmp)
    a(f"v_mul_f32 v{var}, {f32bits(1/640)}, v{var}")
    bfround(a, mean)
    bfround(a, var)
    a(f"v_add_f32 v{var}, {f32bits(1e-5)}, v{var}")
    bfround(a, var)
    a(f"v_sqrt_f32 v{sd}, v{var}")
    a("s_nop 0")
    bfround(a, sd)
    a(f"v_rcp_f32 v{rc}, v{sd}")
    for k in range(10):
        a(f"v_sub_f32 v{e}, v{u+k}, v{mean}")
        bfround(a, e)
        a(f"v_mul_f32 v{tmp}, v{e}, v{rc}")
        a(f"v_fma_f32 v{e}, -v{tmp}, v{sd}, v{e}")
        a(f"v_fma_f32 v{tmp}, v{e}, v{rc}, v{tmp}")
        a(f"v_cvt_pk_bf16_f32 v{u+k}, v{tmp}, v{tmp}")
    a(f"v_mul_u32_u24 v{tmp}, 40, v{L}")
    for k in range(5):
        a(f"ds_write_b64 v{tmp}, v[{u+2*k}:{u+2*k+1}] offset:{ldsbase + 8*k}")

def mfma(a, d, A, B, C=None):
    a(f"v_mfma_f32_16x16x32_bf16 v[{d}:{d+3}], {A}, {B}, " + (f"v[{d}:{d+3}]" if C is None else C))

out = Asm()
kernels = []

def k1():
    a = Asm(); name = "k1_kernel"
    prologue(a, 236, "K1_END")
    load_srd(a, 8, "x"); load_srd(a, 12, "wq"); load_srd(a, 16, "wg"); load_srd(a, 20, "wu"); load_srd(a, 24, "ws")
    masks(a, 8, 9)
    a("s_waitcnt lgkmcnt(0)")
    ln_issue(a, 8, 8, 12)
    a("s_cmp_ge_u32 s2, 128")
    a("s_cbranch_scc1 K1_F")
    a("s_lshr_b32 s4, s2, 2"); a("s_and_b32 s5, s2, 3")
    a("s_mul_i32 s6, s5, 160"); a(f"s_mul_i32 s7, s{WV}, 40"); a("s_add_u32 s6, s6, s7")
    a("s_lshl_b32 s28, s6, 13"); a("s_lshl_b32 s29, s4, 8"); a("s_add_u32 s28, s28, s29")
    a(f"v_mul_u32_u24 v9, {10*8192}, v{G}")
    a(f"v_lshl_add_u32 v9, v{I}, 4, v9")
    for s in range(10):
        a(f"buffer_load_dwordx4 v[{64+4*s}:{67+4*s}], v9, s[12:15], s28 offen {NT}")
        a("s_add_u32 s28, s28, 8192")
    a("s_waitcnt vmcnt(10)")
    ln_compute(a, 12, 20, 30, 0)
    a(f"v_mul_u32_u24 v9, 40, v{G}")
    a("s_lshl_b32 s7, s6, 2")
    a("v_add_u32 v9, s7, v9")
    a("s_waitcnt lgkmcnt(0)")
    for k in range(5):
        a(f"ds_read_b64 v[{20+2*k}:{21+2*k}], v9 offset:{8*k}")
    a("s_waitcnt lgkmcnt(0)")
    for s in range(10):
        selA(a, 40 + 4*(s & 1), 20 + s)
        a(f"s_waitcnt vmcnt({9-s})")
        a("s_nop 0")
        mfma(a, 48, vr(40 + 4*(s & 1), 4), vr(64+4*s, 4), "0" if s == 0 else None)
    a(f"v_lshlrev_b32 v9, 5, v{I}"); a(f"v_lshl_add_u32 v9, v{G}, 4, v9")
    a(f"s_lshl_b32 s7, s{WV}, 9"); a("v_add_u32 v9, s7, v9")
    a(f"v_cmp_gt_u32 vcc, 32, v{L}")
    a("s_and_saveexec_b64 s[30:31], vcc")
    a("s_nop 7")
    a("ds_write_b128 v9, v[48:51] offset:4096")
    a("s_mov_b64 exec, s[30:31]")
    a("s_waitcnt lgkmcnt(0)")
    a("s_barrier")
    a("v_cmp_gt_u32 vcc, 32, v0")
    a("v_lshlrev_b32 v9, 4, v0")
    a("s_and_saveexec_b64 s[30:31], vcc")
    a("s_cbranch_execz K1_END")
    for w in range(4):
        a(f"ds_read_b128 v[{64+4*w}:{67+4*w}], v9 offset:{4096+512*w}")
    a("s_waitcnt lgkmcnt(0)")
    for r in range(4):
        a(f"v_add_f32 v{64+r}, v{64+r}, v{68+r}"); a(f"v_add_f32 v{72+r}, v{72+r}, v{76+r}"); a(f"v_add_f32 v{64+r}, v{64+r}, v{72+r}")
    a("s_lshl_b32 s7, s2, 9")
    a(f"s_add_u32 s7, s7, {QP}")
    a("buffer_store_dwordx4 v[64:67], v9, s[24:27], s7 offen")
    a("s_endpgm")
    a.label("K1_F")
    a("s_sub_u32 s33, s2, 128")
    a("s_lshr_b32 s4, s33, 2"); a("s_and_b32 s5, s33, 3")
    a("s_mul_i32 s6, s5, 160"); a(f"s_mul_i32 s7, s{WV}, 40"); a("s_add_u32 s6, s6, s7")
    a("s_mul_i32 s28, s6, 3456"); a("s_lshl_b32 s29, s4, 7"); a("s_add_u32 s28, s28, s29")
    a(f"v_lshrrev_b32 v10, 3, v{I}")
    a(f"v_lshl_add_u32 v10, v{G}, 1, v10")
    a(f"v_mul_u32_u24 v9, {5*3456}, v10")
    a(f"v_and_b32 v11, 7, v{I}")
    a("v_lshl_add_u32 v9, v11, 4, v9")
    for s in range(5):
        a(f"buffer_load_dwordx4 v[{64+8*s}:{67+8*s}], v9, s[16:19], s28 offen {NT}")
        a(f"buffer_load_dwordx4 v[{68+8*s}:{71+8*s}], v9, s[20:23], s28 offen {NT}")
        a("s_add_u32 s28, s28, 3456")
    a("s_waitcnt vmcnt(10)")
    ln_compute(a, 12, 20, 30, 0)
    a("v_mul_u32_u24 v9, 20, v10")
    a("s_lshl_b32 s7, s6, 2")
    a("v_add_u32 v9, s7, v9")
    a("s_waitcnt lgkmcnt(0)")
    for k in range(5):
        a(f"ds_read_b32 v{20+k}, v9 offset:{4*k}")
    a("s_waitcnt lgkmcnt(0)")
    for s in range(5):
        selA(a, 40 + 4*(s & 1), 20 + s)
        a(f"s_waitcnt vmcnt({8-2*s})")
        a("s_nop 0")
        mfma(a, 48, vr(40 + 4*(s & 1), 4), vr(64+8*s, 4), "0" if s == 0 else None)
        mfma(a, 52, vr(40 + 4*(s & 1), 4), vr(68+8*s, 4), "0" if s == 0 else None)
    a(f"v_lshrrev_b32 v12, 1, v{G}"); a(f"v_lshrrev_b32 v13, 3, v{I}")
    a(f"v_and_b32 v14, 1, v{G}")
    a("v_lshlrev_b32 v9, 5, v11"); a("v_lshl_add_u32 v9, v14, 4, v9"); a("v_lshl_add_u32 v9, v13, 9, v9")
    a(f"s_lshl_b32 s7, s{WV}, 10"); a("v_add_u32 v9, s7, v9")
    a("v_cmp_eq_u32 vcc, v12, v13")
    a("s_and_saveexec_b64 s[30:31], vcc")
    a("s_nop 7")
    a("ds_write_b128 v9, v[48:51] offset:4096")
    a("ds_write_b128 v9, v[52:55] offset:4352")
    a("s_mov_b64 exec, s[30:31]")
    a("s_waitcnt lgkmcnt(0)")
    a("s_barrier")
    a("v_cmp_gt_u32 vcc, 32, v0")
    a("v_lshlrev_b32 v9, 4, v0")
    a("s_and_saveexec_b64 s[30:31], vcc")
    a("s_cbranch_execz K1_END")
    for p in range(8):
        a(f"ds_read_b128 v[{64+4*p}:{67+4*p}], v9 offset:{4096+512*p}")
    a("s_waitcnt lgkmcnt(0)")
    for p in range(1, 8):
        for r in range(4):
            a(f"v_add_f32 v{64+r}, v{64+r}, v{64+4*p+r}")
    a("s_lshl_b32 s7, s33, 9")
    a(f"s_add_u32 s7, s7, {GP}")
    a("buffer_store_dwordx4 v[64:67], v9, s[24:27], s7 offen")
    a.label("K1_END")
    a("s_endpgm")
    kernels.append((name, a, 236, 8192, 128, 128))

def k2():
    a = Asm(); name = "k2_kernel"
    prologue(a, 236, "K2_END")
    load_srd(a, 12, "wuk"); load_srd(a, 16, "wd"); load_srd(a, 24, "ws")
    masks(a, 8, 9)
    a("s_waitcnt lgkmcnt(0)")
    a("s_cmp_ge_u32 s2, 128")
    a("s_cbranch_scc1 K2_F")
    a("s_lshr_b32 s4, s2, 2"); a("s_and_b32 s5, s2, 3")
    a(f"v_lshlrev_b32 v9, 3, v{L}")
    a("s_lshl_b32 s7, s4, 11"); a(f"s_add_u32 s7, s7, {QP}")
    for p in range(4):
        a(f"buffer_load_dwordx2 v[{20+2*p}:{21+2*p}], v9, s[24:27], s7 offen offset:{512*p}")
    a("s_lshl_b32 s6, s5, 7"); a(f"s_lshl_b32 s7, s{WV}, 5"); a("s_add_u32 s6, s6, s7")
    a("s_lshl_b32 s28, s6, 13"); a("s_lshl_b32 s29, s4, 8"); a("s_add_u32 s28, s28, s29")
    a(f"s_add_u32 s29, s28, {4*8192}")
    a(f"v_lshrrev_b32 v10, 2, v{I}"); a(f"v_and_b32 v11, 3, v{I}"); a("v_lshl_add_u32 v10, v10, 3, v11")
    a("v_lshlrev_b32 v10, 13, v10"); a(f"v_lshl_add_u32 v10, v{G}, 4, v10")
    for T in range(2):
        for s in range(4):
            r = 64 + 16*T + 4*s
            a(f"buffer_load_dwordx4 v[{r}:{r+3}], v10, s[12:15], s{28+T} offen offset:{64*s} {NT}")
    a("s_waitcnt vmcnt(8)")
    for r in range(2):
        a(f"v_add_f32 v{20+r}, v{20+r}, v{22+r}"); a(f"v_add_f32 v{24+r}, v{24+r}, v{26+r}"); a(f"v_add_f32 v{20+r}, v{20+r}, v{24+r}")
    a("v_cvt_pk_bf16_f32 v20, v20, v21")
    a(f"v_lshlrev_b32 v9, 2, v{L}")
    a("ds_write_b32 v9, v20")
    a(f"v_lshlrev_b32 v9, 4, v{G}")
    a("s_waitcnt lgkmcnt(0)")
    for s in range(4):
        a(f"ds_read_b128 v[{32+4*s}:{35+4*s}], v9 offset:{64*s}")
    a("s_waitcnt vmcnt(0) lgkmcnt(0)")
    for s in range(4):
        for T in range(2):
            mfma(a, 48 + 4*T, vr(64+16*T+4*s, 4), vr(32+4*s, 4), "0" if s == 0 else None)
    a("s_lshr_b32 s6, s4, 4"); a("s_lshl_b32 s6, s6, 14")
    a(f"s_lshl_b32 s7, s5, 2"); a(f"s_add_u32 s7, s7, s{WV}"); a("s_lshl_b32 s7, s7, 10"); a("s_add_u32 s6, s6, s7")
    a("s_and_b32 s7, s4, 15"); a("s_lshl_b32 s7, s7, 4"); a("s_add_u32 s6, s6, s7"); a(f"s_add_u32 s6, s6, {QAF}")
    a(f"v_lshlrev_b32 v9, 8, v{G}")
    a(f"v_cmp_eq_u32 vcc, 0, v{I}")
    a("s_nop 4")
    for k in range(4):
        a(f"v_cvt_pk_bf16_f32 v{56+k}, v{48+2*k}, v{49+2*k}")
    a("s_and_saveexec_b64 s[30:31], vcc")
    a("buffer_store_dwordx4 v[56:59], v9, s[24:27], s6 offen")
    a("s_endpgm")
    a.label("K2_F")
    a("s_sub_u32 s33, s2, 128")
    a("s_lshr_b32 s4, s33, 2"); a("s_and_b32 s5, s33, 3")
    a("s_lshl_b32 s6, s5, 4"); a(f"s_lshl_b32 s7, s{WV}, 2"); a("s_add_u32 s6, s6, s7")
    a("s_lshl_b32 s7, s4, 11"); a("s_lshl_b32 s28, s6, 2"); a("s_add_u32 s7, s7, s28"); a(f"s_add_u32 s7, s7, {GP}")
    a(f"v_lshlrev_b32 v9, 2, v{G}")
    for p in range(4):
        a(f"buffer_load_dword v{20+p}, v9, s[24:27], s7 offen offset:{512*p}")
        a(f"buffer_load_dword v{24+p}, v9, s[24:27], s7 offen offset:{512*p+256}")
    a("s_lshl_b32 s7, s4, 6"); a("s_add_u32 s6, s6, s7"); a("s_mul_i32 s28, s6, 1280")
    a(f"v_mul_u32_u24 v10, 1280, v{G}"); a(f"v_lshl_add_u32 v10, v{I}, 4, v10")
    for cb in range(5):
        a(f"buffer_load_dwordx4 v[{64+4*cb}:{67+4*cb}], v10, s[16:19], s28 offen offset:{256*cb} {NT}")
    a("s_waitcnt vmcnt(5)")
    for b in (20, 24):
        a(f"v_add_f32 v{b}, v{b}, v{b+1}"); a(f"v_add_f32 v{b+2}, v{b+2}, v{b+3}"); a(f"v_add_f32 v{b}, v{b}, v{b+2}")
        bfround(a, b)
    k0 = math.sqrt(2/math.pi); k1 = 0.044715
    a("v_mul_f32 v21, v20, v20")
    a(f"v_mov_b32 v22, {f32bits(k1)}")
    a("v_fma_f32 v21, v21, v22, 1.0")
    a("v_mul_f32 v21, v21, v20")
    a(f"v_mul_f32 v21, {f32bits(-2*k0*math.log2(math.e))}, v21")
    a("v_exp_f32 v21, v21")
    a("s_nop 0")
    a("v_add_f32 v21, 1.0, v21")
    a("v_rcp_f32 v21, v21")
    a("s_nop 0")
    a("v_mul_f32 v20, v20, v21")
    bfround(a, 20)
    a("v_mul_f32 v20, v20, v24")
    a("v_cvt_pk_bf16_f32 v20, v20, v20")
    selA(a, 40, 20)
    a("s_waitcnt vmcnt(0)")
    a("s_nop 0")
    for cb in range(5):
        mfma(a, 96 + 4*cb, vr(40, 4), vr(64+4*cb, 4), "0")
    reduce640(a, 96, "K2_END", YP, 33)
    a.label("K2_END")
    a("s_endpgm")
    kernels.append((name, a, 236, 16384, 128, 128))

def reduce640(a, d, end, dst, sidx, lds=0):
    a(f"v_lshlrev_b32 v9, 5, v{I}"); a(f"v_lshl_add_u32 v9, v{G}, 4, v9")
    a(f"s_mul_i32 s7, s{WV}, 2560"); a("v_add_u32 v9, s7, v9")
    a(f"v_cmp_gt_u32 vcc, 32, v{L}")
    a("s_and_saveexec_b64 s[30:31], vcc")
    a("s_nop 7")
    for cb in range(5):
        a(f"ds_write_b128 v9, v[{d+4*cb}:{d+4*cb+3}] offset:{lds+512*cb}")
    a("s_mov_b64 exec, s[30:31]")
    a("s_waitcnt lgkmcnt(0)")
    a("s_barrier")
    a("v_cmp_gt_u32 vcc, 160, v0")
    a("v_lshlrev_b32 v9, 4, v0")
    a("s_and_saveexec_b64 s[30:31], vcc")
    a(f"s_cbranch_execz {end}")
    for w in range(4):
        a(f"ds_read_b128 v[{64+4*w}:{67+4*w}], v9 offset:{lds+2560*w}")
    a("s_waitcnt lgkmcnt(0)")
    for r in range(4):
        a(f"v_add_f32 v{64+r}, v{64+r}, v{68+r}"); a(f"v_add_f32 v{72+r}, v{72+r}, v{76+r}"); a(f"v_add_f32 v{64+r}, v{64+r}, v{72+r}")
    a(f"s_mul_i32 s7, s{sidx}, 2560")
    a(f"s_add_u32 s7, s7, {dst}")
    a("buffer_store_dwordx4 v[64:67], v9, s[24:27], s7 offen")

def k3():
    a = Asm(); name = "k3_kernel"
    CK = 0; QL = 131072; PL = QL + 16384; MX = PL + 4096; LS = MX + 256
    prologue(a, 128, "K3_END")
    load_srd(a, 12, "ckv"); load_srd(a, 24, "ws")
    a("s_and_b32 s4, s2, 7"); a("s_lshr_b32 s5, s2, 4"); a("s_lshl_b32 s5, s5, 3"); a("s_or_b32 s4, s4, s5")
    a("s_bfe_u32 s5, s2, 0x10003")
    a("s_waitcnt lgkmcnt(0)")
    a(f"v_lshlrev_b32 v9, 4, v{L}")
    a("s_lshl_b32 s6, s5, 14"); a(f"s_lshl_b32 s7, s{WV}, 12"); a("s_add_u32 s6, s6, s7"); a(f"s_add_u32 s6, s6, {QAF}")
    a(f"s_add_u32 s7, s7, {QL}")
    a("s_mov_b32 m0, s7")
    a("s_nop 0")
    for k in range(4):
        a(f"buffer_load_dwordx4 v9, s[24:27], s6 offen offset:{1024*k} lds")
    for k in range(8):
        a(f"v_xor_b32 v{10+k}, {2*k}, v{L}")
        a(f"v_lshlrev_b32 v{10+k}, 4, v{10+k}")
    a("s_lshl_b32 s6, s4, 17"); a(f"s_lshl_b32 s7, s{WV}, 15"); a("s_add_u32 s6, s6, s7")
    for k in range(32):
        a("s_mov_b32 m0, s7")
        a("s_add_u32 s7, s7, 1024")
        a(f"buffer_load_dwordx4 v{10+(k&7)}, s[12:15], s6 offen {NT} lds")
        a("s_add_u32 s6, s6, 1024")
    a(f"v_and_b32 v9, 7, v{I}"); a("v_lshlrev_b32 v9, 1, v9"); a(f"v_xor_b32 v9, v9, v{G}")
    a(f"s_lshl_b32 s7, s{WV}, 15")
    a(f"v_lshlrev_b32 v18, 10, v{I}"); a("v_add_u32 v18, s7, v18")
    for s4 in range(4):
        a(f"v_xor_b32 v{20+s4}, {4*s4}, v9"); a(f"v_lshl_add_u32 v{20+s4}, v{20+s4}, 4, v18")
    a("s_waitcnt vmcnt(0)")
    a("s_barrier")
    for T in range(2):
        for s in range(16):
            r = 128 + 64*T + 4*s
            a(f"ds_read_b128 v[{r}:{r+3}], v{20+(s&3)} offset:{CK + T*16384 + (s>>2)*256}")
    a(f"v_bfe_u32 v24, v{L}, 2, 2"); a(f"v_and_b32 v25, 3, v{L}")
    a(f"v_lshl_add_u32 v26, v{G}, 2, v24")
    a("v_and_b32 v27, 7, v26"); a("v_lshlrev_b32 v27, 1, v27"); a("v_xor_b32 v27, v27, v25")
    a("v_lshlrev_b32 v26, 10, v26")
    a(f"s_lshl_b32 s7, s{WV}, 8"); a("v_add_u32 v26, s7, v26")
    a("v_lshrrev_b32 v25, 1, v25"); a("v_lshlrev_b32 v25, 3, v25")
    for u in range(4):
        a(f"v_xor_b32 v{28+2*u}, {4*u}, v27"); a(f"v_lshl_add_u32 v{28+2*u}, v{28+2*u}, 4, v26")
        a(f"v_add_u32 v{28+2*u}, v{28+2*u}, v25")
        a(f"v_xor_b32 v{29+2*u}, 8, v{28+2*u}")
    for kg in range(4):
        for t in range(8):
            for hf in range(2):
                r = 32*kg + 4*t + 2*hf
                off = CK + (32*kg + 16*hf) * 1024
                if off > 65535:
                    continue
                a(f"ds_read_b64_tr_b16 a[{r}:{r+1}], v{28+t} offset:{off}")
    for t in range(8):
        a(f"v_add_u32 v{28+t}, 0x10000, v{28+t}")
    for kg in range(2, 4):
        for t in range(8):
            for hf in range(2):
                r = 32*kg + 4*t + 2*hf
                off = CK + (32*kg + 16*hf) * 1024 - 65536
                a(f"ds_read_b64_tr_b16 a[{r}:{r+1}], v{28+t} offset:{off}")
    a(f"v_lshlrev_b32 v9, 4, v{L}"); a(f"v_add_u32 v9, {QL}, v9")
    for s in range(16):
        a(f"ds_read_b128 v[{64+4*s}:{67+4*s}], v9 offset:{1024*s}")
    a("s_waitcnt lgkmcnt(0)")
    for s in range(16):
        for T in range(2):
            mfma(a, 40 + 4*T, vr(128+64*T+4*s, 4), vr(64+4*s, 4), "0" if s == 0 else None)
    a("s_nop 7")
    a(f"s_mov_b32 s28, {f32bits(128 ** -0.5)}")
    for k in range(4):
        a(f"v_cvt_pk_bf16_f32 v48, v{40+2*k}, v{41+2*k}")
        a(f"v_lshlrev_b32 v{40+2*k}, 16, v48"); a(f"v_and_b32 v{41+2*k}, 0xffff0000, v48")
        a(f"v_mul_f32 v{40+2*k}, s28, v{40+2*k}"); a(f"v_mul_f32 v{41+2*k}, s28, v{41+2*k}")
        a(f"v_cvt_pk_bf16_f32 v48, v{40+2*k}, v{41+2*k}")
        a(f"v_lshlrev_b32 v{40+2*k}, 16, v48"); a(f"v_and_b32 v{41+2*k}, 0xffff0000, v48")
    a("v_max3_f32 v48, v40, v41, v42"); a("v_max3_f32 v49, v43, v44, v45"); a("v_max3_f32 v48, v48, v46, v47"); a("v_max_f32 v48, v48, v49")
    cross_rows(a, "v_max_f32", 48, 49)
    a(f"v_lshlrev_b32 v9, 2, v{I}"); a(f"v_add_u32 v9, {MX}, v9")
    a(f"s_lshl_b32 s7, s{WV}, 6"); a("v_add_u32 v10, s7, v9")
    a("ds_write_b32 v10, v48")
    a("s_waitcnt lgkmcnt(0)")
    a("s_barrier")
    for w in range(4):
        a(f"ds_read_b32 v{48+w}, v9 offset:{64*w}")
    a("s_waitcnt lgkmcnt(0)")
    a("v_max3_f32 v48, v48, v49, v50"); a("v_max_f32 v48, v48, v51")
    a(f"s_mov_b32 s28, {f32bits(math.log2(math.e))}")
    a("v_mul_f32 v49, s28, v48")
    for k in range(8):
        a(f"v_fma_f32 v{40+k}, v{40+k}, s28, -v49")
    for k in range(8):
        a(f"v_exp_f32 v{40+k}, v{40+k}")
    a("s_nop 0")
    a("v_add_f32 v50, v40, v41")
    for k in range(2, 8):
        a(f"v_add_f32 v50, v50, v{40+k}")
    for k in range(4):
        a(f"v_cvt_pk_bf16_f32 v{52+k}, v{40+2*k}, v{41+2*k}")
    a(f"v_lshlrev_b32 v11, 4, v{L}"); a(f"v_add_u32 v11, {PL}, v11")
    a(f"s_lshl_b32 s7, s{WV}, 10"); a("v_add_u32 v12, s7, v11")
    a("ds_write_b128 v12, v[52:55]")
    cross_rows(a, "v_add_f32", 50, 51)
    a(f"ds_write_b32 v10, v50 offset:{LS-MX}")
    a("s_waitcnt lgkmcnt(0)")
    a("s_barrier")
    for kg in range(4):
        a(f"ds_read_b128 v[{64+4*kg}:{67+4*kg}], v11 offset:{1024*kg}")
    for w in range(4):
        a(f"ds_read_b32 v{52+w}, v9 offset:{LS-MX+64*w}")
    a("s_waitcnt lgkmcnt(0)")
    for kg in range(4):
        for t in range(8):
            mfma(a, 96 + 4*t, ar(32*kg + 4*t, 4), vr(64+4*kg, 4), "0" if kg == 0 else None)
    a("v_add_f32 v52, v52, v53"); a("v_add_f32 v54, v54, v55"); a("v_add_f32 v49, v52, v54")
    a(f"v_lshlrev_b32 v9, 9, v{I}")
    a("s_lshl_b32 s6, s5, 13"); a("s_lshl_b32 s7, s4, 3"); a("s_add_u32 s6, s6, s7"); a(f"s_add_u32 s6, s6, {ML}")
    a("v_cmp_gt_u32 vcc, 16, v0")
    a("s_and_saveexec_b64 s[30:31], vcc")
    a("s_cbranch_execz K3_NOML")
    a("buffer_store_dwordx2 v[48:49], v9, s[24:27], s6 offen")
    a.label("K3_NOML")
    a("s_mov_b64 exec, s[30:31]")
    a(f"v_lshlrev_b32 v9, 16, v{I}"); a(f"v_lshl_add_u32 v9, v{G}, 4, v9")
    a("s_lshl_b32 s6, s5, 20"); a("s_lshl_b32 s7, s4, 10"); a("s_add_u32 s6, s6, s7")
    a(f"s_lshl_b32 s7, s{WV}, 8"); a("s_add_u32 s6, s6, s7"); a(f"s_add_u32 s6, s6, {OP}")
    a("s_nop 7")
    for u in range(4):
        for k in range(4):
            a(f"v_cvt_pk_bf16_f32 v{64+4*u+k}, v{96+8*u+2*k}, v{97+8*u+2*k}")
        a(f"buffer_store_dwordx4 v[{64+4*u}:{67+4*u}], v9, s[24:27], s6 offen offset:{64*u}")
    a.label("K3_END")
    a("s_endpgm")
    kernels.append((name, a, 128, LS + 256, 384, 256))

def k4():
    a = Asm(); name = "k4_kernel"
    AL = 0; R1 = 256; R2 = R1 + 2048; R3 = R2 + 2048
    prologue(a, 128, "K4_END")
    load_srd(a, 12, "wuv"); load_srd(a, 16, "wo"); load_srd(a, 24, "ws")
    masks(a, 8, 9)
    a("s_lshr_b32 s4, s2, 2"); a("s_and_b32 s5, s2, 1"); a("s_bfe_u32 s33, s2, 0x10001")
    a("s_waitcnt lgkmcnt(0)")
    a(f"v_lshlrev_b32 v9, 3, v{L}")
    a("s_lshl_b32 s6, s4, 9"); a(f"s_add_u32 s6, s6, {ML}")
    a("buffer_load_dwordx2 v[20:21], v9, s[24:27], s6 offen")
    a(f"v_lshlrev_b32 v10, 13, v{G}"); a(f"v_lshl_add_u32 v10, v{I}, 4, v10")
    a("s_lshl_b32 s6, s4, 16"); a(f"s_lshr_b32 s7, s{WV}, 1"); a("s_lshl_b32 s7, s7, 15"); a("s_add_u32 s6, s6, s7")
    a("s_lshl_b32 s7, s33, 9"); a("s_add_u32 s6, s6, s7")
    a(f"s_and_b32 s7, s{WV}, 1"); a("s_lshl_b32 s7, s7, 8"); a("s_add_u32 s6, s6, s7"); a(f"s_add_u32 s6, s6, {OP}")
    for s in range(8):
        a(f"buffer_load_dwordx4 v[{64+4*s}:{67+4*s}], v10, s[24:27], s6 offen offset:{1024*(s&3)}")
        if s == 3: a("s_add_u32 s6, s6, 4096")
    a(f"v_lshrrev_b32 v11, 3, v{I}"); a(f"v_lshl_add_u32 v11, v{G}, 1, v11")
    a(f"v_and_b32 v12, 7, v{I}")
    a("v_lshlrev_b32 v13, 16, v11"); a("v_lshl_add_u32 v13, v12, 4, v13")
    a("s_lshl_b32 s6, s33, 8"); a(f"s_lshl_b32 s7, s{WV}, 6"); a("s_add_u32 s6, s6, s7"); a("s_lshl_b32 s6, s6, 13")
    a("s_lshl_b32 s7, s4, 8"); a("s_add_u32 s6, s6, s7"); a("s_lshl_b32 s7, s5, 7"); a("s_add_u32 s6, s6, s7")
    for s in range(8):
        a(f"buffer_load_dwordx4 v[{96+4*s}:{99+4*s}], v13, s[12:15], s6 offen {NT}")
        a("s_add_u32 s6, s6, 8192")
    a(f"v_mul_u32_u24 v14, {4*1280}, v{G}"); a(f"v_lshl_add_u32 v14, v{I}, 4, v14")
    a("s_lshl_b32 s6, s4, 7"); a("s_lshl_b32 s7, s5, 6"); a("s_add_u32 s6, s6, s7"); a(f"s_lshl_b32 s7, s{WV}, 4"); a("s_add_u32 s6, s6, s7")
    a("s_mul_i32 s6, s6, 1280")
    for s in range(4):
        for cb in range(5):
            r = 128 + 20*s + 4*cb
            a(f"buffer_load_dwordx4 v[{r}:{r+3}], v14, s[16:19], s6 offen offset:{256*cb} {NT}")
        a("s_add_u32 s6, s6, 1280")
    a("s_waitcnt vmcnt(36)")
    a("v_mov_b32 v22, v20")
    wave_allreduce(a, "v_max_f32", 22, 23)
    a("v_sub_f32 v20, v20, v22")
    a(f"v_mul_f32 v20, {f32bits(math.log2(math.e))}, v20")
    a("v_exp_f32 v20, v20")
    a("s_nop 0")
    a("v_cvt_pk_bf16_f32 v20, v20, v20")
    a(f"v_lshlrev_b32 v9, 2, v{L}")
    a(f"ds_write_b32 v9, v20 offset:{AL}")
    a("v_and_b32 v22, 0xffff0000, v20")
    a("v_mul_f32 v22, v22, v21")
    wave_allreduce(a, "v_add_f32", 22, 23)
    a("v_rcp_f32 v22, v22")
    a(f"v_lshlrev_b32 v9, 5, v{G}"); a(f"s_lshr_b32 s7, s{WV}, 1"); a("s_lshl_b32 s7, s7, 7"); a("v_add_u32 v9, s7, v9")
    a("s_waitcnt lgkmcnt(0)")
    a(f"ds_read_b128 v[24:27], v9 offset:{AL}"); a(f"ds_read_b128 v[28:31], v9 offset:{AL+16}")
    a("s_waitcnt lgkmcnt(0)")
    for s in range(8):
        selA(a, 40 + 4*(s & 1), 24 + s)
        a(f"s_waitcnt vmcnt({28+7-s})")
        a("s_nop 0")
        mfma(a, 48, vr(40 + 4*(s & 1), 4), vr(64+4*s, 4), "0" if s == 0 else None)
    a(f"v_lshlrev_b32 v9, 5, v{I}"); a(f"v_lshl_add_u32 v9, v{G}, 4, v9")
    a(f"s_lshl_b32 s7, s{WV}, 9"); a("v_add_u32 v10, s7, v9")
    a(f"v_cmp_gt_u32 vcc, 32, v{L}")
    a("s_and_saveexec_b64 s[30:31], vcc")
    a("s_nop 7")
    a(f"ds_write_b128 v10, v[48:51] offset:{R1}")
    a("s_mov_b64 exec, s[30:31]")
    a("s_waitcnt lgkmcnt(0)")
    a("s_barrier")
    a(f"v_and_b32 v15, 1, v{G}")
    a("v_lshlrev_b32 v10, 5, v11"); a("v_lshl_add_u32 v10, v15, 4, v10")
    a(f"s_lshl_b32 s7, s{WV}, 8"); a("v_add_u32 v10, s7, v10")
    a("v_xor_b32 v16, 16, v10")
    a(f"ds_read_b128 v[24:27], v10 offset:{R1}"); a(f"ds_read_b128 v[28:31], v16 offset:{R1}")
    a(f"ds_read_b128 v[32:35], v10 offset:{R1+1024}"); a(f"ds_read_b128 v[36:39], v16 offset:{R1+1024}")
    a("s_waitcnt lgkmcnt(0)")
    for s in range(8):
        a(f"v_add_f32 v{24+s}, v{24+s}, v{32+s}")
        a(f"v_mul_f32 v{24+s}, v{24+s}, v22")
        a(f"v_cvt_pk_bf16_f32 v{24+s}, v{24+s}, v{24+s}")
    for s in range(8):
        selA(a, 40 + 4*(s & 1), 24 + s)
        a(f"s_waitcnt vmcnt({20+7-s})")
        a("s_nop 0")
        mfma(a, 48, vr(40 + 4*(s & 1), 4), vr(96+4*s, 4), "0" if s == 0 else None)
    a(f"v_lshrrev_b32 v16, 1, v{G}"); a(f"v_lshrrev_b32 v17, 3, v{I}")
    a("v_lshlrev_b32 v10, 5, v12"); a("v_lshl_add_u32 v10, v15, 4, v10"); a("v_lshl_add_u32 v10, v17, 8, v10")
    a(f"s_lshl_b32 s7, s{WV}, 9"); a("v_add_u32 v10, s7, v10")
    a("v_cmp_eq_u32 vcc, v16, v17")
    a("s_and_saveexec_b64 s[30:31], vcc")
    a("s_nop 7")
    a(f"ds_write_b128 v10, v[48:51] offset:{R2}")
    a("s_mov_b64 exec, s[30:31]")
    a("s_waitcnt lgkmcnt(0)")
    a("s_barrier")
    a(f"v_lshlrev_b32 v10, 4, v{G}"); a(f"s_lshl_b32 s7, s{WV}, 6"); a("v_add_u32 v10, s7, v10")
    for p in range(8):
        a(f"ds_read_b128 v[{64+4*p}:{67+4*p}], v10 offset:{R2+256*p}")
    a("s_waitcnt lgkmcnt(0)")
    for p in range(1, 8):
        for r in range(4):
            a(f"v_add_f32 v{64+r}, v{64+r}, v{64+4*p+r}")
    for s in range(4):
        a(f"v_cvt_pk_bf16_f32 v{24+s}, v{64+s}, v{64+s}")
    for s in range(4):
        selA(a, 40 + 4*(s & 1), 24 + s)
        a(f"s_waitcnt vmcnt({15-5*s})")
        a("s_nop 0")
        for cb in range(5):
            mfma(a, 96 + 4*cb, vr(40 + 4*(s & 1), 4), vr(128+20*s+4*cb, 4), "0" if s == 0 else None)
    reduce640(a, 96, "K4_END", SP, 2, lds=R3)
    a.label("K4_END")
    a("s_endpgm")
    kernels.append((name, a, 128, R3 + 10240, 208, 208))

def k5():
    a = Asm(); name = "k5_kernel"
    prologue(a, 40, "K5_END")
    load_srd(a, 8, "x"); load_srd(a, 12, "out"); load_srd(a, 24, "ws")
    a("v_and_b32 v9, 3, v0"); a("v_lshrrev_b32 v10, 2, v0")
    a("v_mul_u32_u24 v11, 2560, v10"); a("v_lshl_add_u32 v11, v9, 4, v11")
    a("s_lshl_b32 s4, s2, 6")
    a(f"s_add_u32 s5, s4, {SP}"); a(f"s_add_u32 s6, s5, {64*2560}")
    a(f"s_add_u32 s7, s4, {YP}"); a(f"s_add_u32 s28, s7, {64*2560}")
    a("v_mov_b32 v32, 0"); a("v_mov_b32 v33, 0"); a("v_mov_b32 v34, 0"); a("v_mov_b32 v35, 0")
    a("s_waitcnt lgkmcnt(0)")
    a("buffer_load_dwordx4 v[20:23], v11, s[24:27], s5 offen")
    a("buffer_load_dwordx4 v[24:27], v11, s[24:27], s6 offen")
    a("buffer_load_dwordx4 v[28:31], v11, s[24:27], s7 offen")
    a("v_cmp_gt_u32 vcc, 44, v10")
    a("s_and_saveexec_b64 s[30:31], vcc")
    a("s_cbranch_execz K5_A")
    a("buffer_load_dwordx4 v[32:35], v11, s[24:27], s28 offen")
    a.label("K5_A")
    a("s_mov_b64 exec, s[30:31]")
    a("v_lshlrev_b32 v12, 1, v0"); a("s_lshl_b32 s29, s2, 5")
    a("buffer_load_ushort v40, v12, s[8:11], s29 offen")
    a("s_waitcnt vmcnt(0)")
    for r in range(4):
        a(f"v_add_f32 v{20+r}, v{20+r}, v{24+r}"); a(f"v_add_f32 v{24+r}, v{28+r}, v{32+r}")
    for ror in (8, 4):
        a("s_nop 1")
        for r in range(8):
            a(f"v_add_f32_dpp v{20+r}, v{20+r}, v{20+r} row_ror:{ror} row_mask:0xf bank_mask:0xf")
    for r in range(8):
        cross_rows(a, "v_add_f32", 20 + r, 36)
    a(f"s_lshl_b32 s7, s{WV}, 7"); a("v_lshlrev_b32 v11, 4, v9"); a("v_add_u32 v11, s7, v11")
    a("ds_write_b128 v11, v[20:23]"); a("ds_write_b128 v11, v[24:27] offset:64")
    a("s_waitcnt lgkmcnt(0)")
    a("s_barrier")
    a("v_cmp_gt_u32 vcc, 16, v0")
    a("v_lshlrev_b32 v11, 2, v0")
    a("s_and_saveexec_b64 s[30:31], vcc")
    a("s_cbranch_execz K5_END")
    for w in range(4):
        a(f"ds_read_b32 v{20+w}, v11 offset:{128*w}"); a(f"ds_read_b32 v{24+w}, v11 offset:{128*w+64}")
    a("s_waitcnt lgkmcnt(0)")
    for b in (20, 24):
        a(f"v_add_f32 v{b}, v{b}, v{b+1}"); a(f"v_add_f32 v{b+2}, v{b+2}, v{b+3}"); a(f"v_add_f32 v{b}, v{b}, v{b+2}")
        bfround(a, b)
    a(f"v_mul_f32 v25, {f32bits(-math.log2(math.e))}, v24")
    a("v_exp_f32 v25, v25"); a("s_nop 0"); a("v_add_f32 v25, 1.0, v25"); a("v_rcp_f32 v25, v25"); a("s_nop 0")
    a("v_mul_f32 v24, v24, v25"); bfround(a, 24)
    a("v_mul_f32 v20, v20, v24"); bfround(a, 20)
    a("v_lshlrev_b32 v40, 16, v40"); a("v_add_f32 v20, v20, v40")
    a("v_cvt_pk_bf16_f32 v20, v20, v20")
    a("buffer_store_short v20, v12, s[12:15], s29 offen")
    a.label("K5_END")
    a("s_endpgm")
    kernels.append((name, a, 40, 1024, 64, 64))

k1(); k2(); k3(); k4(); k5()
hdr = open("recurrent_scan__compressed_kv_cla__geglu_ffn__decode.s.ref").read().split("\n")
hdr = [l for l in hdr if l.startswith(";") and "@launch" not in l and "Override" not in l and "grid=ceil" not in l]
txt = "\n".join(hdr) + "\n"
for name, a, g, lds, vg, acc in kernels:
    txt += f"; @launch kernel={name} grid=({g},1,1) block=(256,1,1) lds={lds}\n"
txt += '.amdgcn_target "amdgcn-amd-amdhsa--gfx950"\n.text\n'
for name, a, g, lds, vg, acc in kernels:
    txt += f".globl {name}\n.p2align 8\n.type {name},@function\n{name}:\n" + a.text()
txt += '.section .rodata,"a"\n'
for name, a, g, lds, vg, acc in kernels:
    txt += ".p2align 6\n" + kernel_desc(name, vg, acc)
open(sys.argv[1], "w").write(txt)
```

```python
import sys, math, json
sys.path.insert(0, "work")
from asmlib import *

OPT = dict(stamps=0, nt="", ntc="", pollA=6, ypace=[], budget=40000)
for kv in sys.argv[2:]:
    k, v = kv.split("=", 1)
    OPT[k] = json.loads(v) if v[:1] in "[0123456789" else v
NT = OPT["nt"]; NTC = OPT["ntc"]

EP = 0x000000
FL2 = 0x001000
FLY = 0x008000
FLS = 0x00C000
QA = 0x010000
QPA, QPB = 0x020000, 0x030000
GPA, GPB = 0x040000, 0x050000
CXA, CXB = 0x060000, 0x0A0000
REC = 0x0E0000
YP = 0x100000
SP = 0x150000
OP = 0x200000
DBG = 0x600000
PITCH = 384
GOLD = 0x9E3779B9

L, I, G = 1, 2, 3
MK = 4
VFF = 8
WV = 3
E = 40
BUD = 41
a = Asm()
nst = [0]
def stamp(k):
    if OPT["stamps"]:
        a(f"s_memrealtime s[{64+2*k}:{65+2*k}]")
def dump_stamps(n):
    if not OPT["stamps"]: return
    a("s_mov_b64 exec, -1")
    a("s_waitcnt lgkmcnt(0)")
    for k in range(n):
        a(f"v_mov_b32 v{16+k}, s{64+2*k}")
    a("s_lshl_b32 s6, s2, 2"); a(f"s_add_u32 s6, s6, s{WV}"); a("s_lshl_b32 s6, s6, 6"); a(f"s_add_u32 s6, s6, {DBG}")
    a("v_mov_b32 v9, 0")
    a("s_mov_b64 exec, 1")
    for k in range(0, n, 4):
        a(f"buffer_store_dwordx4 v[{16+k}:{19+k}], v9, s[24:27], s6 offen offset:{4*k}")

def masks(t0, t1):
    a(f"v_and_b32 v{t0}, 1, v{I}")
    a(f"v_lshlrev_b32 v{t0}, 4, v{t0}")
    a(f"v_mov_b32 v{t1}, 0xffff")
    a(f"v_lshlrev_b32 v{t0}, v{t0}, v{t1}")
    a(f"v_bfe_u32 v{t1}, v{I}, 1, 2")
    for r in range(4):
        a(f"v_cmp_eq_u32 s[{42+2*r}:{43+2*r}], {r}, v{t1}")
    a(f"v_mov_b32 v{VFF}, 0xff")
    for r in range(4):
        a(f"v_cndmask_b32 v{MK+r}, 0, v{t0}, s[{42+2*r}:{43+2*r}]")
def selA(dst, dup):
    for r in range(4):
        a(f"v_and_b32 v{dst+r}, v{dup}, v{MK+r}")
def bfround(v):
    a(f"v_cvt_pk_bf16_f32 v{v}, v{v}, v{v}")
    a(f"v_and_b32 v{v}, 0xffff0000, v{v}")
def mfma(d, A, B, C=None):
    a(f"v_mfma_f32_16x16x32_bf16 v[{d}:{d+3}], {A}, {B}, " + (f"v[{d}:{d+3}]" if C is None else C))
def pk(op, d, x, y, mod=""):
    a(f"v_pk_{op}_f32 v[{d}:{d+1}], v[{x}:{x+1}], v[{y}:{y+1}] {mod}".rstrip())
def tag(regs):
    for r in regs:
        a(f"v_bfi_b32 v{r}, v{VFF}, s{E}, v{r}")
def tagcheck(regs, t):
    a(f"v_xor_b32 v{t}, s{E}, v{regs[0]}")
    for r in regs[1:]:
        a(f"v_bitop3_b32 v{t}, v{t}, v{r}, s{E} bitop3:0xf6")
    a(f"v_and_b32 v{t}, v{VFF}, v{t}")
    a(f"v_cmp_ne_u32 vcc, 0, v{t}")
def spend(giveup):
    a(f"s_sub_u32 s{BUD}, s{BUD}, 1")
    a(f"s_cmp_lt_i32 s{BUD}, 0")
    a(f"s_cbranch_scc1 {giveup}")
lab = [0]
def newlab(p):
    lab[0] += 1
    return f"{p}_{lab[0]}"
def dual_poll(issue, check):
    top, done, tb = newlab("PA"), newlab("PD"), newlab("PB")
    a(f"s_mov_b32 s50, {OPT['pollA']}")
    a.label(top)
    issue(0)
    spend(done)
    a("s_waitcnt vmcnt(0)")
    check()
    a(f"s_cbranch_vccz {done}")
    a("s_sub_u32 s50, s50, 1")
    a(f"s_cbranch_scc0 {top}")
    a("s_mov_b32 s50, 0")
    issue(1)
    a("s_waitcnt vmcnt(0)")
    check()
    a(f"s_cbranch_vccnz {top}")
    a.label(done)
def flag_poll(vaddr, soff, t):
    top, done = newlab("FP"), newlab("FD")
    a.label(top)
    a(f"buffer_load_dword v{t}, v{vaddr}, s[24:27], s{soff} offen sc1")
    spend(done)
    a("s_waitcnt vmcnt(0)")
    a(f"v_cmp_ne_u32 vcc, s{E}, v{t}")
    a(f"s_cbranch_vccnz {top}")
    a.label(done)
def set_flag(base, sidx):
    a(f"s_lshl_b32 s7, s{sidx}, 7"); a(f"s_add_u32 s7, s7, {base}")
    a(f"v_mov_b32 v10, s{E}"); a("v_mov_b32 v9, 0")
    a("s_mov_b64 exec, 1")
    a("buffer_store_dword v10, v9, s[24:27], s7 offen sc1")
    a("s_mov_b64 exec, -1")

def reduce640(d, lds, dst, sidx, end):
    a(f"v_and_b32 v9, 1, v{G}"); a("v_lshlrev_b32 v9, 4, v9"); a(f"v_lshl_add_u32 v9, v{I}, 5, v9")
    a(f"s_mul_i32 s7, s{WV}, 2560"); a("v_add_u32 v9, s7, v9")
    a("v_lshlrev_b32 v10, 4, v0")
    a(f"s_mul_i32 s7, s{sidx}, 2560"); a(f"s_add_u32 s7, s7, {dst}")
    a("v_cmp_gt_u32 vcc, 160, v0")
    a("s_nop 1")
    for cb in range(5):
        a(f"ds_write_b128 v9, v[{d+4*cb}:{d+4*cb+3}] offset:{lds+512*cb}")
    a("s_waitcnt lgkmcnt(0)")
    a("s_barrier")
    a("s_and_saveexec_b64 s[42:43], vcc")
    a(f"s_cbranch_execz {end}")
    for w in range(4):
        a(f"ds_read_b128 v[{64+4*w}:{67+4*w}], v10 offset:{lds+2560*w}")
    a("s_waitcnt lgkmcnt(0)")
    pk("add", 64, 64, 68); pk("add", 66, 66, 70); pk("add", 72, 72, 76); pk("add", 74, 74, 78); pk("add", 64, 64, 72); pk("add", 66, 66, 74)
    tag(range(64, 68))
    a("buffer_store_dwordx4 v[64:67], v10, s[24:27], s7 offen sc1")
    a.label(end)
    a("s_mov_b64 exec, -1")

NAME = "recurrent_scan__compressed_kv_cla__geglu_ffn__decode_kernel"
stamp(0)
a("s_cmp_ge_u32 s2, 256"); a("s_cbranch_scc1 L_END")
load_srd(a, 8, "x"); load_srd(a, 24, "ws")
a(f"v_and_b32 v{L}, 63, v0"); a(f"v_lshrrev_b32 v{I}, 6, v0")
a(f"s_mov_b32 s{BUD}, {OPT['budget']}")
a(f"v_readfirstlane_b32 s{WV}, v{I}")
a(f"v_and_b32 v{I}, 15, v{L}"); a(f"v_lshrrev_b32 v{G}, 4, v{L}")
a("s_cmp_ge_u32 s2, 128"); a("s_cbranch_scc1 L_Y")

XD = 20
UKL = 0
R0 = 32768
QB = R0 + 2048
RG = QB + 1024
AL = RG + 4096 + 2048
R1 = AL + 256
R3 = R1 + 2048
load_srd(a, 12, "wq"); load_srd(a, 16, "wuk")
a("s_and_b32 s4, s2, 7"); a("s_lshl_b32 s4, s4, 2"); a("s_lshr_b32 s5, s2, 5"); a("s_add_u32 s4, s4, s5")
a("s_bfe_u32 s5, s2, 0x20003")
a("s_mul_i32 s6, s5, 160"); a(f"s_mul_i32 s7, s{WV}, 40"); a("s_add_u32 s51, s6, s7")
a("s_lshl_b32 s52, s51, 13"); a("s_lshl_b32 s53, s4, 8"); a("s_add_u32 s52, s52, s53")
a(f"v_mul_u32_u24 v9, 20, v{L}"); a(f"v_mul_u32_u24 v10, 20, v{G}"); a("s_lshl_b32 s6, s51, 1")
a(f"v_mul_u32_u24 v11, {10*8192}, v{G}"); a(f"v_lshl_add_u32 v11, v{I}, 4, v11")
a("s_waitcnt lgkmcnt(0)")
a("buffer_load_dwordx4 v[12:15], v9, s[8:11], 0 offen"); a("buffer_load_dword v16, v9, s[8:11], 0 offen offset:16")
a("buffer_load_dwordx4 v[40:43], v10, s[8:11], s6 offen"); a("buffer_load_dword v44, v10, s[8:11], s6 offen offset:16")
for s in range(10):
    a(f"buffer_load_dwordx4 v[{64+4*s}:{67+4*s}], v11, s[12:15], s52 offen {NT}")
    if s < 9: a("s_add_u32 s52, s52, 8192")
a(f"s_load_dword s{E}, s[24:25], {EP}")
a(f"v_and_b32 v9, 2, v{G}"); a(f"v_xor_b32 v9, v9, v{I}"); a("v_lshlrev_b32 v9, 4, v9"); a(f"v_lshl_add_u32 v17, v{G}, 13, v9")
for k in range(1, 4):
    a(f"v_xor_b32 v{17+k}, {64*k}, v17")
a("s_lshl_b32 s6, s5, 7"); a(f"s_lshl_b32 s7, s{WV}, 5"); a("s_add_u32 s6, s6, s7"); a("s_lshl_b32 s6, s6, 13"); a("s_add_u32 s6, s6, s53")
a(f"s_lshl_b32 s7, s{WV}, 13")
for k in range(8):
    a("s_mov_b32 m0, s7")
    a("s_add_u32 s7, s7, 1024")
    a(f"buffer_load_dwordx4 v{17+(k&3)}, s[16:19], s6 offen {NT} lds")
    if k < 7: a(f"s_add_u32 s6, s6, {4*8192}")
load_srd(a, 20, "wg"); load_srd(a, 28, "wu"); load_srd(a, 32, "wuv"); load_srd(a, 36, "wo")
masks(9, 10)
a("s_waitcnt vmcnt(20)")
stamp(1)
U = 48
for k in range(5):
    a(f"v_lshlrev_b32 v{U+2*k}, 16, v{12+k}"); a(f"v_and_b32 v{U+2*k+1}, 0xffff0000, v{12+k}")
pk("add", 30, U, U+2); pk("add", 32, U+4, U+6); pk("add", 30, 30, U+8); pk("add", 30, 30, 32)
a("v_add_f32 v30, v30, v31")
wave_allreduce(a, "v_add_f32", 30, 31)
a(f"v_mul_f32 v30, {f32bits(-1/640)}, v30")
for k in range(5):
    pk("add", U+2*k, U+2*k, 30, "op_sel_hi:[1,0]")
pk("mul", 32, U, U)
for k in range(1, 5):
    a(f"v_pk_fma_f32 v[32:33], v[{U+2*k}:{U+2*k+1}], v[{U+2*k}:{U+2*k+1}], v[32:33]")
a("v_add_f32 v32, v32, v33")
wave_allreduce(a, "v_add_f32", 32, 33)
a(f"v_mul_f32 v32, {f32bits(1/640)}, v32")
bfround(30); bfround(32)
a(f"v_add_f32 v32, {f32bits(1e-5)}, v32")
bfround(32)
a("v_sqrt_f32 v32, v32")
a("s_waitcnt vmcnt(18)")
for k in range(5):
    a(f"v_lshlrev_b32 v{U+2*k}, 16, v{40+k}"); a(f"v_and_b32 v{U+2*k+1}, 0xffff0000, v{40+k}")
bfround(32)
a("v_rcp_f32 v32, v32")
for k in range(5):
    pk("add", U+2*k, U+2*k, 30, "op_sel_hi:[1,0]")
for k in range(5):
    a(f"v_cvt_pk_bf16_f32 v34, v{U+2*k}, v{U+2*k+1}")
    a(f"v_lshlrev_b32 v{U+2*k}, 16, v34"); a(f"v_and_b32 v{U+2*k+1}, 0xffff0000, v34")
    pk("mul", U+2*k, U+2*k, 32, "op_sel_hi:[1,0]")
    a(f"v_cvt_pk_bf16_f32 v{XD+2*k}, v{U+2*k}, v{U+2*k}"); a(f"v_cvt_pk_bf16_f32 v{XD+2*k+1}, v{U+2*k+1}, v{U+2*k+1}")
a(f"v_and_b32 v9, 1, v{G}"); a("v_lshlrev_b32 v9, 4, v9"); a(f"v_lshl_add_u32 v14, v{I}, 5, v9")
a(f"s_lshl_b32 s7, s{WV}, 9"); a("v_add_u32 v15, s7, v14")
stamp(2)
for s in range(10):
    selA(40 + 4*(s & 1), XD + s)
    a(f"s_waitcnt vmcnt({17-s})")
    a("s_nop 0")
    mfma(48, vr(40 + 4*(s & 1), 4), vr(64+4*s, 4), "0" if s == 0 else None)
a("s_waitcnt lgkmcnt(0)")
a(f"s_add_u32 s{E}, s{E}, {hex(GOLD)}")
a(f"v_lshlrev_b32 v9, 4, v{L}")
a("s_lshl_b32 s6, s4, 11"); a("s_lshl_b32 s7, s5, 9"); a("s_add_u32 s7, s7, s6")
a(f"s_add_u32 s54, s7, {QPA}"); a(f"s_add_u32 s55, s7, {QPB}")
a(f"s_add_u32 s56, s6, {QPA}"); a(f"s_add_u32 s57, s6, {QPB}")
a(f"ds_write_b128 v15, v[48:51] offset:{R0}")
stamp(3)
a("s_waitcnt lgkmcnt(0)")
a("s_barrier")
a(f"s_cmp_lg_u32 s{WV}, 0"); a("s_cbranch_scc1 X_NOQP")
a("s_mov_b32 exec_hi, 0")
for w in range(4):
    a(f"ds_read_b128 v[{64+4*w}:{67+4*w}], v9 offset:{R0+512*w}")
a("s_waitcnt lgkmcnt(0)")
pk("add", 64, 64, 68); pk("add", 66, 66, 70); pk("add", 72, 72, 76); pk("add", 74, 74, 78); pk("add", 64, 64, 72); pk("add", 66, 66, 74)
tag(range(64, 68))
a("buffer_store_dwordx4 v[64:67], v9, s[24:27], s54 offen")
a("buffer_store_dwordx4 v[64:67], v9, s[24:27], s55 offen sc1")
a("s_mov_b64 exec, -1")
a.label("X_NOQP")
a(f"v_and_b32 v9, 7, v{I}"); a("v_lshlrev_b32 v9, 1, v9"); a(f"v_xor_b32 v9, v9, v{G}"); a("v_lshlrev_b32 v9, 4, v9")
a(f"v_lshl_add_u32 v9, v{I}, 9, v9"); a(f"s_lshl_b32 s7, s{WV}, 13"); a("v_add_u32 v16, s7, v9")
for s in range(1, 4):
    a(f"v_xor_b32 v{16+s}, {64*s}, v16")
a(f"v_lshlrev_b32 v11, 3, v{L}")
a("s_waitcnt vmcnt(2)" )
a(f"s_cmp_eq_u32 s{WV}, 0"); a("s_cbranch_scc1 X_UKW"); a("s_waitcnt vmcnt(0)"); a.label("X_UKW")
for T in range(2):
    for s in range(4):
        a(f"ds_read_b128 v[{96+16*T+4*s}:{99+16*T+4*s}], v{16+s} offset:{UKL+256*T}")
stamp(4)
def iss(k):
    for p in range(4):
        a(f"buffer_load_dwordx2 v[{64+2*p}:{65+2*p}], v11, s[24:27], s{56+k} offen offset:{512*p} sc1")
dual_poll(iss, lambda: tagcheck(list(range(64, 72)), 9))
stamp(5)
a(f"s_cmp_lg_u32 s{WV}, 0"); a("s_cbranch_scc1 X_NOF2")
a("s_lshl_b32 s58, s4, 2"); a("s_add_u32 s58, s58, s5")
set_flag(FL2, 58)
a.label("X_NOF2")
pk("add", 64, 64, 66); pk("add", 68, 68, 70); pk("add", 64, 64, 68)
a(f"s_lshl_b32 s7, s{WV}, 8"); a(f"v_lshl_add_u32 v9, v{L}, 2, s7"); a(f"v_lshl_add_u32 v10, v{G}, 4, s7")
a("v_cvt_pk_bf16_f32 v64, v64, v65")
a(f"ds_write_b32 v9, v64 offset:{QB}")
a("s_waitcnt lgkmcnt(0)")
for s in range(4):
    a(f"ds_read_b128 v[{64+4*s}:{67+4*s}], v10 offset:{QB+64*s}")
a("s_lshl_b32 s6, s4, 11"); a("s_lshl_b32 s7, s5, 2"); a(f"s_add_u32 s7, s7, s{WV}"); a("s_lshl_b32 s7, s7, 7"); a("s_add_u32 s6, s6, s7"); a(f"s_add_u32 s6, s6, {QA}")
a(f"v_lshlrev_b32 v9, 2, v{L}")
a(f"v_cmp_gt_u32 vcc, 16, v{L}")
for s in range(4):
    a(f"s_waitcnt lgkmcnt({3-s})" if not OPT["stamps"] else "s_waitcnt lgkmcnt(0)")
    for T in range(2):
        mfma(48 + 4*T, vr(64+4*s, 4), vr(96+16*T+4*s, 4), "0" if s == 0 else None)
a("s_nop 7")
a("v_cvt_pk_bf16_f32 v56, v48, v52")
a("s_nop 1")
a("v_add_u32_dpp v57, v56, v56 quad_perm:[1,0,3,2] row_mask:0xf bank_mask:0xf")
a("s_nop 1")
a("v_add_u32_dpp v57, v57, v57 quad_perm:[2,3,0,1] row_mask:0xf bank_mask:0xf")
a(f"v_add_u32 v57, s{E}, v57")
a("v_cndmask_b32 v56, v57, v56, vcc")
a("s_mov_b32 exec_hi, 0")
a("buffer_store_dword v56, v9, s[24:27], s6 offen sc1")
a("s_mov_b64 exec, -1")
stamp(6)
a(f"v_lshrrev_b32 v12, 3, v{I}")
a(f"v_and_b32 v13, 7, v{I}")
a("s_cmp_ge_u32 s4, 27"); a("s_cbranch_scc1 X_NOG1")
a(f"v_lshl_add_u32 v9, v{G}, 1, v12"); a(f"v_mul_u32_u24 v9, {5*3456}, v9"); a("v_lshl_add_u32 v9, v13, 4, v9")
a("s_mul_i32 s6, s51, 3456"); a("s_lshl_b32 s7, s4, 7"); a("s_add_u32 s6, s6, s7")
for s in range(5):
    a(f"buffer_load_dwordx4 v[{64+8*s}:{67+8*s}], v9, s[20:23], s6 offen {NT}")
    a(f"buffer_load_dwordx4 v[{68+8*s}:{71+8*s}], v9, s[28:31], s6 offen {NT}")
    if s < 4: a("s_add_u32 s6, s6, 3456")
a.label("X_NOG1")
a(f"v_lshlrev_b32 v9, 13, v{G}"); a(f"v_lshl_add_u32 v9, v{I}, 4, v9")
a("s_lshl_b32 s6, s5, 7"); a(f"s_lshl_b32 s7, s{WV}, 2"); a("s_add_u32 s6, s6, s7"); a("s_lshl_b32 s6, s6, 13"); a("s_add_u32 s6, s6, s53")
for s in range(8):
    a(f"buffer_load_dwordx4 v[{128+4*s}:{131+4*s}], v9, s[32:35], s6 offen {NT}")
    if s < 7: a(f"s_add_u32 s6, s6, {16*8192}")
a(f"v_lshrrev_b32 v9, 1, v{G}"); a(f"v_and_b32 v10, 1, v{G}"); a("v_lshlrev_b32 v9, 2, v9"); a("v_add_u32 v9, v9, v10")
a("v_mul_u32_u24 v9, 2560, v9"); a(f"v_lshl_add_u32 v9, v{I}, 4, v9")
a("s_lshl_b32 s6, s4, 7"); a("s_and_b32 s7, s5, 1"); a("s_lshl_b32 s7, s7, 6"); a("s_add_u32 s6, s6, s7")
a("s_lshr_b32 s7, s5, 1"); a("s_lshl_b32 s7, s7, 2"); a("s_add_u32 s6, s6, s7"); a(f"s_lshl_b32 s7, s{WV}, 4"); a("s_add_u32 s6, s6, s7")
a("s_mul_i32 s6, s6, 1280")
for s in range(2):
    for cb in range(5):
        r = 160 + 20*s + 4*cb
        a(f"buffer_load_dwordx4 v[{r}:{r+3}], v9, s[36:39], s6 offen offset:{1280*s+256*cb} {NT}")
a("s_cmp_ge_u32 s4, 27"); a("s_cbranch_scc1 X_NOG2")
a("v_cmp_eq_u32 vcc, 1, v12")
a(f"v_lshrrev_b32 v9, 1, v{G}"); a(f"v_and_b32 v10, 1, v{G}")
for s in range(5):
    a(f"v_cndmask_b32 v{XD+s}, v{XD+s}, v{XD+5+s}, vcc")
a("v_cmp_eq_u32 vcc, v9, v12")
a("v_lshlrev_b32 v9, 5, v13"); a("v_lshl_add_u32 v9, v10, 4, v9"); a("v_lshl_add_u32 v9, v12, 9, v9")
a(f"s_lshl_b32 s7, s{WV}, 10"); a("v_add_u32 v9, s7, v9")
a(f"v_lshlrev_b32 v10, 4, v{L}"); a("v_add_u32 v11, 4096, v10")
a("v_cndmask_b32 v9, v11, v9, vcc")
for s in range(5):
    selA(40 + 4*(s & 1), XD + s)
    a(f"s_waitcnt vmcnt({18+8-2*s})")
    a("s_nop 0")
    mfma(48, vr(40 + 4*(s & 1), 4), vr(64+8*s, 4), "0" if s == 0 else None)
    mfma(52, vr(40 + 4*(s & 1), 4), vr(68+8*s, 4), "0" if s == 0 else None)
a("s_lshl_b32 s6, s4, 11"); a("s_lshl_b32 s7, s5, 9"); a("s_add_u32 s7, s7, s6")
a(f"s_add_u32 s54, s7, {GPA}"); a(f"s_add_u32 s55, s7, {GPB}")
a("s_nop 3")
a(f"ds_write_b128 v9, v[48:51] offset:{RG}"); a(f"ds_write_b128 v9, v[52:55] offset:{RG+256}")
stamp(7)
a("s_waitcnt lgkmcnt(0)")
a("s_barrier")
a(f"s_cmp_lg_u32 s{WV}, 0"); a("s_cbranch_scc1 X_NOG2")
a("s_mov_b32 exec_hi, 0")
for p in range(8):
    a(f"ds_read_b128 v[{64+4*p}:{67+4*p}], v10 offset:{RG+512*p}")
a("s_waitcnt lgkmcnt(0)")
for p in (0, 2, 4, 6):
    pk("add", 64+4*p, 64+4*p, 68+4*p); pk("add", 66+4*p, 66+4*p, 70+4*p)
for p in (0, 4):
    pk("add", 64+4*p, 64+4*p, 72+4*p); pk("add", 66+4*p, 66+4*p, 74+4*p)
pk("add", 64, 64, 80); pk("add", 66, 66, 82)
tag(range(64, 68))
a("buffer_store_dwordx4 v[64:67], v10, s[24:27], s54 offen")
a("buffer_store_dwordx4 v[64:67], v10, s[24:27], s55 offen sc1")
a("s_mov_b64 exec, -1")
a.label("X_NOG2")
a(f"v_lshlrev_b32 v9, 8, v{L}")
a("s_lshr_b32 s6, s4, 4"); a("s_lshl_b32 s6, s6, 14"); a("s_and_b32 s7, s4, 15"); a("s_lshl_b32 s7, s7, 4"); a("s_add_u32 s6, s6, s7"); a(f"s_add_u32 s54, s6, {REC}")
a(f"v_mul_u32_u24 v10, {4*PITCH}, v{G}"); a(f"v_lshl_add_u32 v11, v{I}, 2, v10"); a(f"v_lshl_add_u32 v10, v{I}, 4, v10")
a("s_lshl_b32 s6, s4, 2"); a("s_add_u32 s58, s6, s5"); a(f"s_mul_i32 s6, s58, {64*PITCH}"); a(f"s_mul_i32 s7, s{WV}, {16*PITCH}"); a("s_add_u32 s6, s6, s7"); a(f"s_add_u32 s55, s6, {OP}")
stamp(8)
a.label("X_RP")
a("buffer_load_dwordx4 v[32:35], v9, s[24:27], s54 offen sc1")
spend("X_RD")
a("s_waitcnt vmcnt(0)")
a(f"v_cmp_ne_u32 vcc, s{E}, v34")
a("s_cbranch_vccnz X_RP")
a.label("X_RD")
stamp(9)
def iss3():
    for s in range(4):
        a(f"buffer_load_dwordx4 v[{64+4*s}:{67+4*s}], v10, s[24:27], s55 offen offset:{PITCH*s} sc1")
    for s in range(4):
        a(f"buffer_load_dword v{80+s}, v11, s[24:27], s55 offen offset:{PITCH*s+256} sc1")
iss3()
a("v_mov_b32 v36, v32")
wave_allreduce(a, "v_max_f32", 36, 37)
a("v_sub_f32 v32, v32, v36")
a(f"v_mul_f32 v32, {f32bits(math.log2(math.e))}, v32")
a("v_exp_f32 v32, v32")
a(f"v_lshlrev_b32 v9, 2, v{L}")
a("v_cvt_pk_bf16_f32 v32, v32, v32")
a(f"ds_write_b32 v9, v32 offset:{AL}")
a("v_and_b32 v36, 0xffff0000, v32")
a("v_mul_f32 v36, v36, v33")
wave_allreduce(a, "v_add_f32", 36, 37)
a("v_rcp_f32 v36, v36")
a(f"s_lshl_b32 s7, s{WV}, 6"); a(f"v_lshl_add_u32 v9, v{G}, 4, s7")
a("s_waitcnt lgkmcnt(0)")
a(f"ds_read_b128 v[32:35], v9 offset:{AL}")
a(f"s_lshl_b32 s59, s{E}, 2")
a("s_waitcnt lgkmcnt(0)")
for s in range(4):
    selA(96 + 4*s, 32 + s)
a.label("X_OP")
a("s_waitcnt vmcnt(0)")
a("v_add3_u32 v9, v64, v65, s59")
for k in range(66, 80, 2):
    a(f"v_add3_u32 v9, v{k}, v{k+1}, v9")
a("v_add3_u32 v38, v80, v81, v82"); a("v_add_u32 v38, v38, v83")
a("v_cmp_ne_u32 vcc, v9, v38")
a("s_cbranch_vccz X_OD")
spend("X_OD")
iss3()
a("s_branch X_OP")
a.label("X_OD")
stamp(10)
for s in range(4):
    mfma(48, vr(96+4*s, 4), vr(64+4*s, 4), "0" if s == 0 else None)
a(f"s_lshl_b32 s7, s{WV}, 7"); a(f"v_lshl_add_u32 v9, v{G}, 5, s7")
a("s_lshl_b32 s6, s4, 13"); a("s_lshl_b32 s7, s5, 2"); a(f"s_add_u32 s7, s7, s{WV}"); a("s_lshl_b32 s7, s7, 9"); a("s_add_u32 s7, s7, s6")
a(f"s_add_u32 s54, s7, {CXA}"); a(f"s_add_u32 s55, s7, {CXB}")
a(f"ds_write_b128 v15, v[48:51] offset:{R1}")
a("s_lshl_b32 s7, s5, 7"); a("s_add_u32 s6, s6, s7"); a(f"s_lshl_b32 s7, s{WV}, 5"); a("s_add_u32 s6, s6, s7")
a(f"s_add_u32 s56, s6, {CXA}"); a(f"s_add_u32 s57, s6, {CXB}")
a(f"v_lshlrev_b32 v11, 9, v{I}"); a(f"v_lshl_add_u32 v11, v{G}, 3, v11")
a(f"v_lshlrev_b32 v10, 4, v{L}")
a("s_waitcnt lgkmcnt(0)")
a("s_barrier")
for p in range(4):
    a(f"ds_read_b128 v[{64+8*p}:{67+8*p}], v9 offset:{R1+512*p}"); a(f"ds_read_b128 v[{68+8*p}:{71+8*p}], v9 offset:{R1+512*p+16}")
a("s_waitcnt lgkmcnt(0)")
for k in range(0, 8, 2):
    pk("add", 64+k, 64+k, 72+k); pk("add", 80+k, 80+k, 88+k)
for k in range(0, 8, 2):
    pk("add", 64+k, 64+k, 80+k)
for k in range(0, 8, 2):
    pk("mul", 64+k, 64+k, 36, "op_sel_hi:[1,0]")
for s in range(8):
    a(f"v_cvt_pk_bf16_f32 v{64+s}, v{64+s}, v{64+s}")
for s in range(8):
    selA(40 + 4*(s & 1), 64 + s)
    a("s_nop 1")
    mfma(48, vr(40 + 4*(s & 1), 4), vr(128+4*s, 4), "0" if s == 0 else None)
a("s_nop 6")
a("s_mov_b32 exec_hi, 0")
tag(range(48, 52))
a("buffer_store_dwordx4 v[48:51], v10, s[24:27], s54 offen")
a("buffer_store_dwordx4 v[48:51], v10, s[24:27], s55 offen sc1")
a("s_mov_b64 exec, -1")
stamp(11)
dual_poll(lambda k: a(f"buffer_load_dwordx2 v[64:65], v11, s[24:27], s{56+k} offen sc1"), lambda: tagcheck([64, 65], 9))
stamp(12)
a(f"s_cmp_lg_u32 s{WV}, 0"); a("s_cbranch_scc1 X_NOFS")
set_flag(FLS, 2)
a.label("X_NOFS")
for ror in (8, 4, 2, 1):
    a("s_nop 0")
    a(f"v_add_f32_dpp v64, v64, v64 row_ror:{ror} row_mask:0xf bank_mask:0xf")
    a(f"v_add_f32_dpp v65, v65, v65 row_ror:{ror} row_mask:0xf bank_mask:0xf")
a("v_cvt_pk_bf16_f32 v64, v64, v64"); a("v_cvt_pk_bf16_f32 v65, v65, v65")
selA(40, 64); selA(44, 65)
a("s_nop 1")
for s in range(2):
    for cb in range(5):
        mfma(96 + 4*cb, vr(40+4*s, 4), vr(160+20*s+4*cb, 4), "0" if s == 0 else None)
reduce640(96, R3, SP, 2, "X_SPD")
stamp(13)
dump_stamps(16)
a("s_endpgm")

a.label("L_Y")
CK = 0; QL = 131072; PL = QL + 16384; MX = PL + 4096; LS = MX + 256; YR = 0; FR = 16384
LDS_BYTES = LS + 256
load_srd(a, 12, "ckv"); load_srd(a, 16, "wd"); load_srd(a, 20, "out")
a("s_sub_u32 s60, s2, 128")
a("s_and_b32 s4, s60, 7"); a("s_lshr_b32 s5, s60, 4"); a("s_lshl_b32 s5, s5, 3"); a("s_or_b32 s4, s4, s5")
a("s_bfe_u32 s5, s60, 0x10003")
a("s_and_b32 s61, s60, 7"); a("s_lshl_b32 s61, s61, 2"); a("s_lshr_b32 s6, s60, 5"); a("s_add_u32 s61, s61, s6")
a("s_bfe_u32 s62, s60, 0x20003")
for k in range(8):
    a(f"v_xor_b32 v{10+k}, {2*k}, v{L}"); a(f"v_lshlrev_b32 v{10+k}, 4, v{10+k}")
a("s_lshl_b32 s6, s4, 17"); a(f"s_lshl_b32 s7, s{WV}, 15"); a("s_add_u32 s6, s6, s7")
a("s_waitcnt lgkmcnt(0)")
a(f"s_load_dword s{E}, s[24:25], {EP}")
pace = dict(OPT["ypace"])
for k in range(32):
    a("s_mov_b32 m0, s7")
    a("s_add_u32 s7, s7, 1024")
    a(f"buffer_load_dwordx4 v{10+(k&7)}, s[12:15], s6 offen {NTC} lds")
    a("s_add_u32 s6, s6, 1024")
    if k in pace: a(f"s_waitcnt vmcnt({pace[k]})")
stamp(1)
masks(9, 10)
a(f"v_and_b32 v9, 7, v{I}"); a("v_lshlrev_b32 v9, 1, v9"); a(f"v_xor_b32 v9, v9, v{G}"); a("v_lshlrev_b32 v9, 4, v9"); a(f"v_lshl_add_u32 v9, v{I}, 10, v9")
a(f"s_lshl_b32 s7, s{WV}, 15"); a("v_add_u32 v20, s7, v9"); a(f"v_add_u32 v24, {QL}, v9")
for s in range(1, 4):
    a(f"v_xor_b32 v{20+s}, {64*s}, v20"); a(f"v_xor_b32 v{24+s}, {64*s}, v24")
a(f"v_bfe_u32 v9, v{L}, 2, 2"); a(f"v_lshl_add_u32 v9, v{G}, 2, v9"); a("v_and_b32 v10, 7, v9"); a("v_lshlrev_b32 v10, 5, v10")
a("v_lshl_add_u32 v10, v9, 10, v10"); a(f"v_and_b32 v9, 3, v{L}"); a("v_lshl_add_u32 v10, v9, 3, v10")
a(f"s_lshl_b32 s7, s{WV}, 8"); a("v_add_u32 v28, s7, v10")
for T in range(1, 8):
    a(f"v_xor_b32 v{28+T}, {32*T}, v28")
a(f"s_and_b32 s7, s{WV}, 1"); a("s_lshl_b32 s7, s7, 3"); a(f"v_xor_b32 v9, s7, v{L}"); a("v_lshlrev_b32 v9, 4, v9")
a(f"s_lshl_b32 s7, s{WV}, 12"); a(f"s_add_u32 s7, s7, {QL}"); a("v_add_u32 v36, s7, v9")
for r in range(1, 4):
    a(f"v_xor_b32 v{36+r}, {32*r}, v36")
a(f"v_lshrrev_b32 v9, 2, v{L}"); a(f"v_and_b32 v10, 3, v{L}"); a("v_lshlrev_b32 v10, 4, v10"); a("v_lshl_add_u32 v18, v9, 7, v10")
a("s_lshl_b32 s6, s5, 2"); a(f"s_add_u32 s6, s6, s{WV}")
a("s_lshl_b32 s7, s6, 13"); a(f"s_add_u32 s54, s7, {QA}"); a("s_add_u32 s55, s54, 4096")
a("s_lshl_b32 s7, s6, 11"); a(f"s_add_u32 s56, s7, {FL2}")
a(f"v_lshlrev_b32 v19, 7, v{I}")
a("s_waitcnt vmcnt(16)")
for s in range(16):
    a(f"ds_read_b128 v[{128+4*s}:{131+4*s}], v{20+(s&3)} offset:{(s>>2)*256}")
a("s_waitcnt vmcnt(0)")
for s in range(16):
    a(f"ds_read_b128 v[{192+4*s}:{195+4*s}], v{20+(s&3)} offset:{16384+(s>>2)*256}")
stamp(2)
a("s_waitcnt lgkmcnt(0)")
a(f"s_add_u32 s{E}, s{E}, {hex(GOLD)}")
a(f"s_lshl_b32 s59, s{E}, 2")
a("s_mov_b64 exec, 0xffff")
flag_poll(19, 56, 9)
a("s_mov_b64 exec, -1")
stamp(3)
a.label("Y_QP")
for r in range(4):
    a(f"buffer_load_dwordx4 v[{64+4*r}:{67+4*r}], v18, s[24:27], s{54+(r>>1)} offen offset:{2048*(r&1)} sc1")
for r in range(4):
    a(f"buffer_load_dword v{80+r}, v18, s[24:27], s{54+(r>>1)} offen offset:{2048*(r&1)+64} sc1")
spend("Y_QD")
a("s_waitcnt vmcnt(0)")
for r in range(4):
    a(f"ds_write_b128 v{36+r}, v[{64+4*r}:{67+4*r}] offset:{1024*r}")
a("v_add3_u32 v9, v64, v65, s59")
for k in range(66, 80, 2):
    a(f"v_add3_u32 v9, v{k}, v{k+1}, v9")
a("v_add3_u32 v10, v80, v81, v82"); a("v_add_u32 v10, v10, v83")
a("v_cmp_ne_u32 vcc, v9, v10")
a("s_cbranch_vccnz Y_QP")
a.label("Y_QD")
stamp(4)
a("s_cmp_ge_u32 s61, 27"); a("s_cbranch_scc1 Y_NOD1")
a("s_lshl_b32 s6, s61, 6"); a("s_lshl_b32 s7, s62, 4"); a("s_add_u32 s6, s6, s7"); a(f"s_lshl_b32 s7, s{WV}, 2"); a("s_add_u32 s6, s6, s7"); a("s_mul_i32 s6, s6, 1280")
a(f"v_mul_u32_u24 v9, 1280, v{G}"); a(f"v_lshl_add_u32 v9, v{I}, 4, v9")
for cb in range(5):
    a(f"buffer_load_dwordx4 a[{128+4*cb}:{131+4*cb}], v9, s[16:19], s6 offen offset:{256*cb} {NT}")
a.label("Y_NOD1")
a("s_waitcnt lgkmcnt(0)")
a("s_barrier")
trs = [(kg, T, hf) for kg in range(4) for T in range(8) for hf in range(2)]
def tr(n):
    kg, T, hf = trs[n]
    if n == 32:
        for t in range(8): a(f"v_add_u32 v{28+t}, 0x10000, v{28+t}")
    off = (32*kg + 16*hf) * 1024 - (65536 if kg >= 2 else 0)
    r = 32*kg + 4*T + 2*hf
    a(f"ds_read_b64_tr_b16 a[{r}:{r+1}], v{28+T} offset:{off}")
for s in range(8):
    a(f"ds_read_b128 v[{64+4*s}:{67+4*s}], v{24+(s&3)} offset:{(s>>2)*256}")
n = 0
pend = [("q", s) for s in range(8)]
for s in range(16):
    if s <= 9:
        idx = pend.index(("q", s if s < 9 else 15))
        a(f"s_waitcnt lgkmcnt({len(pend) - 1 - idx})")
        pend = pend[idx+1:]
    mfma(40, vr(128+4*s, 4), vr(64+4*s, 4), "0" if s == 0 else None)
    if s + 8 < 16:
        a(f"ds_read_b128 v[{64+4*(s+8)}:{67+4*(s+8)}], v{24+(s&3)} offset:{((s+8)>>2)*256}"); pend.append(("q", s+8))
    else:
        tr(n); pend.append(("t", n)); n += 1
        tr(n); pend.append(("t", n)); n += 1
    mfma(44, vr(192+4*s, 4), vr(64+4*s, 4), "0" if s == 0 else None)
    if s + 8 >= 16:
        tr(n); pend.append(("t", n)); n += 1
        tr(n); pend.append(("t", n)); n += 1
for _ in range(8):
    tr(n); n += 1
a(f"s_mov_b32 s52, {f32bits(128 ** -0.5)}")
a(f"s_mov_b32 s53, {f32bits(math.log2(math.e))}")
for k in range(4):
    a(f"v_cvt_pk_bf16_f32 v48, v{40+2*k}, v{41+2*k}")
    a(f"v_lshlrev_b32 v{40+2*k}, 16, v48"); a(f"v_and_b32 v{41+2*k}, 0xffff0000, v48")
    a(f"v_mul_f32 v{40+2*k}, s52, v{40+2*k}"); a(f"v_mul_f32 v{41+2*k}, s52, v{41+2*k}")
    a(f"v_cvt_pk_bf16_f32 v48, v{40+2*k}, v{41+2*k}")
    a(f"v_lshlrev_b32 v{40+2*k}, 16, v48"); a(f"v_and_b32 v{41+2*k}, 0xffff0000, v48")
    tr(n); n += 1
    tr(n); n += 1
a("v_max3_f32 v48, v40, v41, v42"); a("v_max3_f32 v49, v43, v44, v45"); a("v_max3_f32 v48, v48, v46, v47"); a("v_max_f32 v48, v48, v49")
cross_rows(a, "v_max_f32", 48, 49)
a(f"v_lshlrev_b32 v9, 2, v{I}"); a(f"v_add_u32 v9, {MX}, v9")
a(f"s_lshl_b32 s7, s{WV}, 6"); a("v_add_u32 v10, s7, v9")
a("ds_write_b32 v10, v48")
a(f"v_lshlrev_b32 v11, 4, v{L}"); a(f"v_add_u32 v11, {PL}, v11")
a(f"s_lshl_b32 s7, s{WV}, 10"); a("v_add_u32 v12, s7, v11")
stamp(5)
a("s_waitcnt lgkmcnt(0)")
a("s_barrier")
for w in range(4):
    a(f"ds_read_b32 v{48+w}, v9 offset:{64*w}")
a("s_waitcnt lgkmcnt(0)")
a("v_max3_f32 v48, v48, v49, v50"); a("v_max_f32 v48, v48, v51")
a("v_mul_f32 v49, s53, v48")
for k in range(8):
    a(f"v_fma_f32 v{40+k}, v{40+k}, s53, -v49")
    tr(n); n += 1
for k in range(8):
    a(f"v_exp_f32 v{40+k}, v{40+k}")
    tr(n); n += 1
assert n == 64
a("s_nop 0")
for k in range(4):
    a(f"v_cvt_pk_bf16_f32 v{52+k}, v{40+2*k}, v{41+2*k}")
a("ds_write_b128 v12, v[52:55]")
pk("add", 40, 40, 42); pk("add", 44, 44, 46); pk("add", 40, 40, 44); a("v_add_f32 v50, v40, v41")
cross_rows(a, "v_add_f32", 50, 51)
a(f"ds_write_b32 v10, v50 offset:{LS-MX}")
a(f"v_mul_u32_u24 v13, {16*64*PITCH}, v{G}"); a(f"v_lshl_add_u32 v14, v{I}, 2, v13"); a(f"v_lshl_add_u32 v13, v{I}, 4, v13")
a("s_lshl_b32 s6, s5, 6"); a(f"s_add_u32 s6, s6, s{WV}"); a("s_lshl_b32 s6, s6, 6"); a("s_add_u32 s6, s6, s4"); a(f"s_mul_i32 s6, s6, {PITCH}"); a(f"s_add_u32 s54, s6, {OP}")
for r in range(1, 4):
    a(f"s_add_u32 s{54+r}, s54, {r*4*64*PITCH}")
a("s_waitcnt lgkmcnt(0)")
a("s_barrier")
for kg in range(4):
    a(f"ds_read_b128 v[{64+4*kg}:{67+4*kg}], v11 offset:{1024*kg}")
a(f"s_cmp_lg_u32 s{WV}, 0"); a("s_cbranch_scc1 Y_NOREC")
for w in range(4):
    a(f"ds_read_b32 v{52+w}, v9 offset:{LS-MX+64*w}")
a("s_lshl_b32 s6, s5, 6"); a("s_add_u32 s6, s6, s4"); a("s_lshl_b32 s6, s6, 8"); a(f"s_add_u32 s6, s6, {REC}")
a(f"v_mov_b32 v50, s{E}"); a(f"v_mov_b32 v51, s{E}"); a(f"v_lshlrev_b32 v9, 4, v{L}")
a("s_waitcnt lgkmcnt(0)")
a("v_add_f32 v52, v52, v53"); a("v_add_f32 v54, v54, v55"); a("v_add_f32 v49, v52, v54")
a("s_mov_b64 exec, 0xffff")
a("buffer_store_dwordx4 v[48:51], v9, s[24:27], s6 offen sc1")
a("s_mov_b64 exec, -1")
a.label("Y_NOREC")
stamp(6)
a("s_waitcnt lgkmcnt(0)")
for kg in range(4):
    for T in range(8):
        mfma(96 + 4*T, vr(64+4*kg, 4), ar(32*kg + 4*T, 4), "0" if kg == 0 else None)
a("s_nop 7")
for r in range(4):
    for k in range(4):
        a(f"v_cvt_pk_bf16_f32 v{64+4*r+k}, v{96+8*k+r}, v{100+8*k+r}")
    a(f"buffer_store_dwordx4 v[{64+4*r}:{67+4*r}], v13, s[24:27], s{54+r} offen sc1")
    a(f"v_add3_u32 v{80+r}, v{64+4*r}, v{65+4*r}, s{E}")
    a(f"v_add3_u32 v{80+r}, v{66+4*r}, v{67+4*r}, v{80+r}")
    a(f"buffer_store_dword v{80+r}, v14, s[24:27], s{54+r} offen offset:256 sc1")
stamp(7)
a("s_cmp_ge_u32 s61, 27"); a("s_cbranch_scc1 Y_NOD2")
a(f"v_and_b32 v9, 7, v{I}"); a("v_lshlrev_b32 v9, 8, v9"); a(f"v_lshl_add_u32 v11, v{G}, 2, v9")
a("s_lshl_b32 s6, s61, 11"); a("s_lshl_b32 s7, s62, 6"); a("s_add_u32 s6, s6, s7"); a(f"s_lshl_b32 s7, s{WV}, 4"); a("s_add_u32 s6, s6, s7")
a(f"s_add_u32 s56, s6, {GPA}"); a(f"s_add_u32 s57, s6, {GPB}")
dual_poll(lambda k: a(f"buffer_load_dword v64, v11, s[24:27], s{56+k} offen sc1"), lambda: tagcheck([64], 9))
stamp(8)
a("s_lshl_b32 s58, s61, 2"); a("s_add_u32 s58, s58, s62")
a(f"s_cmp_lg_u32 s{WV}, 0"); a("s_cbranch_scc1 Y_NOFY")
set_flag(FLY, 58)
a.label("Y_NOFY")
a("s_nop 0")
a("v_add_f32_dpp v64, v64, v64 row_ror:2 row_mask:0xf bank_mask:0xf")
a("s_nop 1")
a("v_add_f32_dpp v64, v64, v64 row_ror:4 row_mask:0xf bank_mask:0xf")
bfround(64)
a("s_nop 1")
a("v_mov_b32_dpp v65, v64 quad_perm:[1,1,3,3] row_mask:0xf bank_mask:0xf")
a("v_mov_b32_dpp v64, v64 quad_perm:[0,0,2,2] row_mask:0xf bank_mask:0xf")
k0 = math.sqrt(2/math.pi); k1 = 0.044715
a("v_mul_f32 v66, v64, v64"); a(f"v_mov_b32 v67, {f32bits(k1)}"); a("v_fma_f32 v66, v66, v67, 1.0"); a("v_mul_f32 v66, v66, v64")
a(f"v_mul_f32 v66, {f32bits(-2*k0*math.log2(math.e))}, v66")
a("v_exp_f32 v66, v66"); a("s_nop 0"); a("v_add_f32 v66, 1.0, v66"); a("v_rcp_f32 v66, v66"); a("s_nop 0")
a("v_mul_f32 v64, v64, v66"); bfround(64)
a("v_mul_f32 v64, v64, v65"); a("v_cvt_pk_bf16_f32 v64, v64, v64")
selA(40, 64)
a("s_nop 1")
for cb in range(5):
    mfma(96 + 4*cb, vr(40, 4), ar(128+4*cb, 4), "0")
reduce640(96, YR, YP, 58, "Y_YPD")
a.label("Y_NOD2")
stamp(9)
a("s_cmp_ge_u32 s60, 40"); a("s_cbranch_scc1 Y_FIN")
a("v_lshlrev_b32 v12, 1, v0"); a("s_lshl_b32 s58, s60, 5")
a("buffer_load_ushort v40, v12, s[8:11], s58 offen")
a("v_and_b32 v9, 3, v0"); a("v_lshrrev_b32 v10, 2, v0"); a("v_lshlrev_b32 v13, 4, v9")
a("v_mul_u32_u24 v14, 2560, v10"); a("v_add_u32 v14, v14, v13")
a("v_add_u32 v15, 64, v10")
a("v_min_u32 v16, 107, v15"); a("v_mul_u32_u24 v16, 2560, v16"); a("v_add_u32 v16, v16, v13")
a("v_cmp_gt_u32 s[44:45], 44, v10")
a(f"s_lshl_b32 s7, s{WV}, 4"); a(f"v_lshl_add_u32 v17, v{G}, 6, v{I}"); a("v_add_u32 v17, s7, v17")
a("v_min_u32 v18, 107, v17"); a("v_lshlrev_b32 v18, 7, v18"); a("v_lshlrev_b32 v17, 7, v17")
a("s_lshl_b32 s6, s60, 6"); a(f"s_add_u32 s54, s6, {YP}"); a(f"s_add_u32 s55, s6, {SP}"); a(f"s_add_u32 s56, s55, {64*2560}")
a(f"s_mov_b32 s52, {FLY}"); a(f"s_mov_b32 s53, {FLS}")
a("s_mov_b32 exec_hi, 0")
flag_poll(18, 52, 19)
a("s_mov_b64 exec, -1")
a.label("Y_YF")
a("buffer_load_dwordx4 v[64:67], v14, s[24:27], s54 offen sc1")
a("buffer_load_dwordx4 v[68:71], v16, s[24:27], s54 offen sc1")
spend("Y_YG")
a("s_waitcnt vmcnt(0)")
tagcheck(list(range(64, 72)), 19)
a("s_cbranch_vccnz Y_YF")
a.label("Y_YG")
stamp(10)
for r in range(4):
    a(f"v_cndmask_b32 v{68+r}, 0, v{68+r}, s[44:45]")
pk("add", 24, 64, 68); pk("add", 26, 66, 70)
def red4(base):
    for ror in (8, 4):
        for r in range(4):
            a(f"v_add_f32_dpp v{base+r}, v{base+r}, v{base+r} row_ror:{ror} row_mask:0xf bank_mask:0xf")
    for sw in ("v_permlane16_swap_b32", "v_permlane32_swap_b32"):
        for r in range(4): a(f"v_mov_b32 v{32+r}, v{base+r}")
        for r in range(4): a(f"{sw} v{base+r}, v{32+r}")
        pk("add", base, base, 32); pk("add", base+2, base+2, 34)
a("s_nop 0")
red4(24)
a(f"s_lshl_b32 s7, s{WV}, 7"); a("v_add_u32 v13, s7, v13")
a(f"ds_write_b128 v13, v[24:27] offset:{FR+64}")
a("s_mov_b32 exec_hi, 0")
flag_poll(17, 53, 19)
a("s_mov_b64 exec, -1")
stamp(11)
a.label("Y_SF")
a("buffer_load_dwordx4 v[64:67], v14, s[24:27], s55 offen sc1")
a("buffer_load_dwordx4 v[68:71], v14, s[24:27], s56 offen sc1")
spend("Y_SG")
a("s_waitcnt vmcnt(0)")
tagcheck(list(range(64, 72)), 19)
a("s_cbranch_vccnz Y_SF")
a.label("Y_SG")
stamp(12)
pk("add", 20, 64, 68); pk("add", 22, 66, 70)
a("s_nop 0")
red4(20)
a(f"ds_write_b128 v13, v[20:23] offset:{FR}")
a("v_lshlrev_b32 v11, 2, v0")
a("s_waitcnt lgkmcnt(0)")
a("s_barrier")
a(f"s_cmp_lg_u32 s{WV}, 0"); a("s_cbranch_scc1 Y_FIN")
a("s_mov_b64 exec, 0xffff")
for w in range(4):
    a(f"ds_read_b32 v{20+w}, v11 offset:{FR+128*w}"); a(f"ds_read_b32 v{24+w}, v11 offset:{FR+128*w+64}")
a("s_waitcnt lgkmcnt(0)")
for b in (24, 20):
    a(f"v_add_f32 v{b}, v{b}, v{b+1}"); a(f"v_add_f32 v{b+2}, v{b+2}, v{b+3}"); a(f"v_add_f32 v{b}, v{b}, v{b+2}")
    bfround(b)
a(f"v_mul_f32 v25, {f32bits(-math.log2(math.e))}, v24")
a("v_exp_f32 v25, v25"); a("s_nop 0"); a("v_add_f32 v25, 1.0, v25"); a("v_rcp_f32 v25, v25"); a("s_nop 0")
a("v_mul_f32 v24, v24, v25"); bfround(24)
a("v_mul_f32 v20, v20, v24"); bfround(20)
a("v_lshlrev_b32 v40, 16, v40"); a("v_add_f32 v20, v20, v40")
a("v_cvt_pk_bf16_f32 v20, v20, v20")
a("buffer_store_short v20, v12, s[20:23], s58 offen")
a("s_cmp_lg_u32 s60, 0"); a("s_cbranch_scc1 Y_FIN")
a(f"v_mov_b32 v10, s{E}"); a("v_mov_b32 v9, 0")
a("s_mov_b64 exec, 1")
a(f"buffer_store_dword v10, v9, s[24:27], 0 offen offset:{EP} sc1")
a.label("Y_FIN")
stamp(13)
dump_stamps(16)
a.label("L_END")
a("s_endpgm")

hdr = open("recurrent_scan__compressed_kv_cla__geglu_ffn__decode.s.ref").read().split("\n")
hdr = [l for l in hdr if l.startswith(";") and "@launch" not in l]
txt = "\n".join(hdr) + f"\n; @launch grid=(256,1,1) block=(256,1,1) lds={LDS_BYTES}\n"
txt += f'.amdgcn_target "amdgcn-amd-amdhsa--gfx950"\n.text\n.globl {NAME}\n.p2align 8\n.type {NAME},@function\n{NAME}:\n' + a.text()
txt += '.section .rodata,"a"\n.p2align 6\n' + kernel_desc(NAME, 408, 256, 102)
open(sys.argv[1], "w").write(txt)
```

```python
import sys, math, json
sys.path.insert(0, "work")
from asmlib import *

OPT = dict(stamps=0, nt="", ntc="", pollA=6, budget=40000, ukpre=0, yw1=0, yw2=0, lw=0, fw=0, lnpos=10,
           reck=32, fl2pos=0, flspos=0, fall=0, hintmax=24, nolate=0, nockv=0, lgate=0, fine=0, warm=1, woaft=5)
for kv in sys.argv[2:]:
    k, v = kv.split("=", 1)
    assert k in OPT, k
    OPT[k] = json.loads(v) if v[:1] in "[0123456789" else v
NT = OPT["nt"]; NTC = OPT["ntc"]

EP = 0x000000
FL2 = 0x001000
FLS = 0x009000
FLY = 0x011000
QA = 0x018000
QC = 0x020000
QPA, QPB = 0x030000, 0x040000
GPA, GPB = 0x050000, 0x060000
CXA, CXB = 0x070000, 0x0B0000
REC = 0x0F0000
YP = 0x100000
SP = 0x150000
OP = 0x200000
OC = 0x400000
DBG = 0x600000
GOLD = 0x9E3779B9
LOG2E = math.log2(math.e)

L, I, G = 1, 2, 3
MK = 4
VFF = 8
WV = 3
E = 40
BUD = 41
a = Asm()
def fstamp(k, role):
    if OPT["fine"] == role:
        a(f"s_memtime s[{68+2*k}:{69+2*k}]")
def stamp(k):
    if OPT["stamps"] and not OPT["fine"]:
        a(f"s_memrealtime s[{68+2*k}:{69+2*k}]")
def dump_stamps(n):
    if not OPT["stamps"]: return
    a("s_mov_b64 exec, -1")
    a("s_waitcnt lgkmcnt(0)")
    for k in range(n):
        a(f"v_mov_b32 v{16+k}, s{68+2*k}")
    a("s_lshl_b32 s6, s2, 2"); a(f"s_add_u32 s6, s6, s{WV}"); a("s_lshl_b32 s6, s6, 6"); a(f"s_add_u32 s6, s6, {DBG}")
    a("v_mov_b32 v9, 0")
    a("s_mov_b64 exec, 1")
    for k in range(0, n, 4):
        a(f"buffer_store_dwordx4 v[{16+k}:{19+k}], v9, s[24:27], s6 offen offset:{4*k}")
def lgk(n):
    a(f"s_waitcnt lgkmcnt({n})")

def masks(t0, t1):
    a(f"v_and_b32 v{t0}, 1, v{I}")
    a(f"v_lshlrev_b32 v{t0}, 4, v{t0}")
    a(f"v_mov_b32 v{t1}, 0xffff")
    a(f"v_lshlrev_b32 v{t0}, v{t0}, v{t1}")
    a(f"v_bfe_u32 v{t1}, v{I}, 1, 2")
    for r in range(4):
        a(f"v_cmp_eq_u32 s[{42+2*r}:{43+2*r}], {r}, v{t1}")
    a(f"v_mov_b32 v{VFF}, 0xff")
    for r in range(4):
        a(f"v_cndmask_b32 v{MK+r}, 0, v{t0}, s[{42+2*r}:{43+2*r}]")
def selA(dst, dup):
    for r in range(4):
        a(f"v_and_b32 v{dst+r}, v{dup}, v{MK+r}")
def bfround(v):
    a(f"v_cvt_pk_bf16_f32 v{v}, v{v}, v{v}")
    a(f"v_and_b32 v{v}, 0xffff0000, v{v}")
def mfma(d, A, B, C=None):
    a(f"v_mfma_f32_16x16x32_bf16 v[{d}:{d+3}], {A}, {B}, " + (f"v[{d}:{d+3}]" if C is None else C))
def pk(op, d, x, y, mod=""):
    a(f"v_pk_{op}_f32 v[{d}:{d+1}], v[{x}:{x+1}], v[{y}:{y+1}] {mod}".rstrip())
def sum4x4(d, b):
    pk("add", b, b, b+4); pk("add", b+2, b+2, b+6); pk("add", b+8, b+8, b+12); pk("add", b+10, b+10, b+14)
    pk("add", d, b, b+8); pk("add", d+2, b+2, b+10)
def tag(regs):
    for r in regs:
        a(f"v_bfi_b32 v{r}, v{VFF}, s{E}, v{r}")
def tagcheck(regs, t):
    a(f"v_xor_b32 v{t}, s{E}, v{regs[0]}")
    for r in regs[1:]:
        a(f"v_bitop3_b32 v{t}, v{t}, v{r}, s{E} bitop3:0xf6")
    a(f"v_and_b32 v{t}, v{VFF}, v{t}")
    a(f"v_cmp_ne_u32 vcc, 0, v{t}")
def cwcheck(p, c, t0, t1):
    a(f"v_add3_u32 v{t0}, v{p}, v{p+1}, s59")
    a(f"v_add3_u32 v{t1}, v{c}, v{c+1}, v{c+2}")
    for k in range(p+2, p+16, 2):
        a(f"v_add3_u32 v{t0}, v{k}, v{k+1}, v{t0}")
    a(f"v_add_u32 v{t1}, v{t1}, v{c+3}")
    a(f"v_cmp_ne_u32 vcc, v{t0}, v{t1}")
def spend(giveup):
    a(f"s_sub_u32 s{BUD}, s{BUD}, 1")
    a(f"s_cmp_lt_i32 s{BUD}, 0")
    a(f"s_cbranch_scc1 {giveup}")
lab = [0]
def newlab(p):
    lab[0] += 1
    return f"{p}_{lab[0]}"
def only_wave0(fn):
    l = newlab("W0")
    a(f"s_cmp_lg_u32 s{WV}, 0"); a(f"s_cbranch_scc1 {l}")
    fn()
    a.label(l)
def dual_poll(issue, check, storeB):
    top, done = newlab("PA"), newlab("PD")
    a(f"s_mov_b32 s50, {OPT['pollA']}")
    a.label(top)
    issue(0)
    spend(done)
    a("s_waitcnt vmcnt(0)")
    check()
    a(f"s_cbranch_vccz {done}")
    a("s_sub_u32 s50, s50, 1")
    a(f"s_cbranch_scc0 {top}")
    storeB()
    a("s_mov_b32 s50, 0")
    issue(1)
    a("s_waitcnt vmcnt(0)")
    check()
    a(f"s_cbranch_vccnz {top}")
    a.label(done)
def hint_poll(vaddr, soff, t, wide=False):
    top, done = newlab("FP"), newlab("FD")
    a.label(top)
    if wide: a(f"buffer_load_dwordx4 v[{t}:{t+3}], v{vaddr}, s[24:27], s{soff} offen sc1")
    else: a(f"buffer_load_dword v{t}, v{vaddr}, s[24:27], s{soff} offen sc1")
    spend(done)
    a("s_waitcnt vmcnt(0)")
    if wide:
        a(f"v_xor_b32 v{t}, s{E}, v{t}")
        for r in range(1, 4): a(f"v_bitop3_b32 v{t}, v{t}, v{t+r}, s{E} bitop3:0xf6")
        a(f"v_cmp_ne_u32 vcc, 0, v{t}")
    else:
        a(f"v_cmp_ne_u32 vcc, s{E}, v{t}")
    a(f"s_cbranch_vccnz {top}")
    a.label(done)

def ln(raw, own, out, w1, w2, U=48, T=30):
    a(f"s_waitcnt vmcnt({w1})")
    stamp(1)
    m, v, t = T, T+2, T+4
    for k in range(5):
        a(f"v_lshlrev_b32 v{U+2*k}, 16, v{raw+k}"); a(f"v_and_b32 v{U+2*k+1}, 0xffff0000, v{raw+k}")
    pk("add", m, U, U+2); pk("add", v, U+4, U+6); pk("add", m, m, U+8); pk("add", m, m, v)
    a(f"v_add_f32 v{m}, v{m}, v{m+1}")
    wave_allreduce(a, "v_add_f32", m, m+1)
    a(f"v_mul_f32 v{m}, {f32bits(-1/640)}, v{m}")
    for k in range(5):
        pk("add", U+2*k, U+2*k, m, "op_sel_hi:[1,0]")
    pk("mul", v, U, U)
    for k in range(1, 5):
        a(f"v_pk_fma_f32 v[{v}:{v+1}], v[{U+2*k}:{U+2*k+1}], v[{U+2*k}:{U+2*k+1}], v[{v}:{v+1}]")
    a(f"v_add_f32 v{v}, v{v}, v{v+1}")
    wave_allreduce(a, "v_add_f32", v, v+1)
    a(f"v_mul_f32 v{v}, {f32bits(1/640)}, v{v}")
    bfround(m); bfround(v)
    a(f"v_add_f32 v{v}, {f32bits(1e-5)}, v{v}")
    bfround(v)
    a(f"v_sqrt_f32 v{v}, v{v}")
    a(f"s_waitcnt vmcnt({w2})")
    for k in range(5):
        a(f"v_lshlrev_b32 v{U+2*k}, 16, v{own+k}"); a(f"v_and_b32 v{U+2*k+1}, 0xffff0000, v{own+k}")
    bfround(v)
    a(f"v_rcp_f32 v{v}, v{v}")
    for k in range(5):
        pk("add", U+2*k, U+2*k, m, "op_sel_hi:[1,0]")
    for k in range(5):
        a(f"v_cvt_pk_bf16_f32 v{t}, v{U+2*k}, v{U+2*k+1}")
        a(f"v_lshlrev_b32 v{U+2*k}, 16, v{t}"); a(f"v_and_b32 v{U+2*k+1}, 0xffff0000, v{t}")
        pk("mul", U+2*k, U+2*k, v, "op_sel_hi:[1,0]")
        a(f"v_cvt_pk_bf16_f32 v{out+2*k}, v{U+2*k}, v{U+2*k}"); a(f"v_cvt_pk_bf16_f32 v{out+2*k+1}, v{U+2*k+1}, v{U+2*k+1}")
def x_loads(raw, own, srow):
    a(f"buffer_load_dwordx4 v[{raw}:{raw+3}], v9, s[8:11], 0 offen"); a(f"buffer_load_dword v{raw+4}, v9, s[8:11], 0 offen offset:16")
    a(f"buffer_load_dwordx4 v[{own}:{own+3}], v10, s[8:11], s{srow} offen"); a(f"buffer_load_dword v{own+4}, v10, s[8:11], s{srow} offen offset:16")

def red640_setup(vw, vr_, sdst, dst, sidx):
    a(f"s_mul_i32 s7, s{WV}, 2560"); a(f"v_add_u32 v{vw}, s7, v14")
    a(f"v_lshlrev_b32 v{vr_}, 4, v0")
    a(f"s_mul_i32 s7, s{sidx}, 2560"); a(f"s_add_u32 s{sdst}, s7, {dst}")
    a("v_cmp_gt_u32 vcc, 160, v0"); a("s_mov_b64 s[46:47], vcc")
def red640_finish(lds, vr_, sdst):
    end = newlab("RF")
    lgk(0)
    a("s_barrier")
    a("s_mov_b64 exec, s[46:47]")
    a(f"s_cbranch_execz {end}")
    for w in range(4):
        a(f"ds_read_b128 v[{64+4*w}:{67+4*w}], v{vr_} offset:{lds+2560*w}")
    lgk(0)
    sum4x4(64, 64)
    tag(range(64, 68))
    a(f"buffer_store_dwordx4 v[64:67], v{vr_}, s[24:27], s{sdst} offen sc1")
    a.label(end)
    a("s_mov_b64 exec, -1")

NAME = "recurrent_scan__compressed_kv_cla__geglu_ffn__decode_kernel"
stamp(0)
a("s_cmp_ge_u32 s2, 256"); a("s_cbranch_scc1 L_END")
load_srd(a, 8, "x"); load_srd(a, 24, "ws")
a(f"v_and_b32 v{L}, 63, v0"); a(f"v_lshrrev_b32 v{I}, 6, v0")
a(f"s_mov_b32 s{BUD}, {OPT['budget']}")
a(f"v_readfirstlane_b32 s{WV}, v{I}")
a(f"v_and_b32 v{I}, 15, v{L}"); a(f"v_lshrrev_b32 v{G}, 4, v{L}")
a("s_and_b32 s4, s2, 7"); a("s_lshl_b32 s4, s4, 2"); a("s_bfe_u32 s5, s2, 0x20005"); a("s_add_u32 s4, s4, s5")
a("s_bfe_u32 s5, s2, 0x20003")
a("s_mul_i32 s6, s5, 160"); a(f"s_mul_i32 s7, s{WV}, 40"); a("s_add_u32 s51, s6, s7"); a("s_lshl_b32 s52, s51, 1")
a(f"v_mul_u32_u24 v9, 20, v{L}"); a(f"v_mul_u32_u24 v10, 20, v{G}")
a("s_cmp_ge_u32 s2, 128"); a("s_cbranch_scc1 L_Y")

XD = 20
UKL = 0
R0 = 32768
QB = R0 + 2048
QG = QB + 1024
AL = QG + 256
ML = AL + 256
R1 = ML + 64
R3 = R1 + 2048
load_srd(a, 12, "wq"); load_srd(a, 16, "wuk")
a("s_lshl_b32 s54, s51, 13"); a("s_lshl_b32 s53, s4, 8"); a("s_add_u32 s54, s54, s53")
a(f"v_mul_u32_u24 v11, {10*8192}, v{G}"); a(f"v_lshl_add_u32 v11, v{I}, 4, v11")
lgk(0)
x_loads(212, 40, 52)
for s in range(10):
    a(f"buffer_load_dwordx4 v[{64+4*s}:{67+4*s}], v11, s[12:15], s54 offen {NT}")
    if s < 9: a("s_add_u32 s54, s54, 8192")
WARM = OPT["warm"]
if WARM:
    a("s_lshl_b32 s6, s4, 11"); a("s_lshl_b32 s7, s5, 9"); a("s_add_u32 s6, s6, s7"); a(f"s_lshl_b32 s7, s{WV}, 7"); a("s_add_u32 s6, s6, s7"); a(f"s_add_u32 s6, s6, {QPA}")
    a("s_mov_b64 exec, 1")
    a("buffer_load_dword v217, v9, s[24:27], s6 offen")
    a("s_mov_b64 exec, -1")
a(f"s_load_dword s{E}, s[24:25], {EP}")
load_srd(a, 32, "wuv"); load_srd(a, 36, "wo")
a(f"v_and_b32 v9, 2, v{G}"); a(f"v_xor_b32 v9, v9, v{I}"); a("v_lshlrev_b32 v9, 4, v9"); a(f"v_lshl_add_u32 v36, v{G}, 13, v9")
for k in range(1, 4):
    a(f"v_xor_b32 v{36+k}, {64*k}, v36")
a("s_lshl_b32 s6, s5, 7"); a(f"s_lshl_b32 s7, s{WV}, 5"); a("s_add_u32 s6, s6, s7"); a("s_lshl_b32 s6, s6, 13"); a("s_add_u32 s62, s6, s53")
a(f"s_lshl_b32 s63, s{WV}, 13")
def ukdma(k):
    a("s_mov_b32 m0, s63")
    a("s_add_u32 s63, s63, 1024")
    a(f"buffer_load_dwordx4 v{36+(k&3)}, s[16:19], s62 offen {NT} lds")
    if k < 7: a(f"s_add_u32 s62, s62, {4*8192}")
UKP = OPT["ukpre"]
for k in range(UKP): ukdma(k)
masks(9, 10)
a(f"v_and_b32 v9, 1, v{G}"); a("v_lshlrev_b32 v9, 4, v9"); a(f"v_lshl_add_u32 v14, v{I}, 5, v9")
a(f"s_lshl_b32 s7, s{WV}, 9"); a("v_add_u32 v15, s7, v14")
a(f"v_and_b32 v9, 7, v{I}"); a("v_lshlrev_b32 v9, 1, v9"); a(f"v_xor_b32 v9, v9, v{G}"); a("v_lshlrev_b32 v9, 4, v9")
a(f"v_lshl_add_u32 v9, v{I}, 9, v9"); a(f"s_lshl_b32 s7, s{WV}, 13"); a("v_add_u32 v200, s7, v9")
for s in range(1, 4):
    a(f"v_xor_b32 v{200+s}, {64*s}, v200")
a(f"v_lshlrev_b32 v204, 4, v{L}"); a(f"v_lshlrev_b32 v205, 3, v{L}")
a(f"s_lshl_b32 s7, s{WV}, 8"); a(f"v_lshl_add_u32 v206, v{L}, 2, s7"); a(f"v_lshl_add_u32 v207, v{G}, 4, s7")
a(f"s_lshl_b32 s7, s{WV}, 6"); a(f"v_lshl_add_u32 v208, v{I}, 2, s7")
a(f"v_lshlrev_b32 v209, 2, v{L}"); a(f"v_lshlrev_b32 v210, 12, v{L}")
a("s_lshl_b32 s6, s4, 11"); a("s_lshl_b32 s7, s5, 9"); a("s_add_u32 s7, s7, s6")
a(f"s_add_u32 s54, s7, {QPA}"); a(f"s_add_u32 s55, s7, {QPB}")
a(f"s_add_u32 s56, s6, {QPA}"); a(f"s_add_u32 s57, s6, {QPB}")
a("s_lshl_b32 s6, s4, 2"); a("s_add_u32 s58, s6, s5")
a("s_lshl_b32 s6, s58, 8"); a(f"s_add_u32 s60, s6, {QA}"); a("s_lshl_b32 s6, s58, 6"); a(f"s_add_u32 s61, s6, {QC}")
a("s_lshl_b32 s6, s4, 7"); a(f"s_add_u32 s64, s6, {FL2}"); a(f"s_add_u32 s65, s6, {FLS}")
if OPT["fall"]:
    a("s_lshl_b32 s6, s5, 2"); a("s_add_u32 s64, s64, s6")
fstamp(0, 3)
a("s_waitcnt vmcnt(12)") if OPT["fine"] == 3 else None
fstamp(1, 3)
ln(212, 40, XD, 12 + UKP + WARM, 10 + UKP + WARM)
fstamp(2, 3)
stamp(2)
selA(40, XD)
for s in range(10):
    if s < 9: selA(40 + 4*((s+1) & 1), XD + s + 1)
    a(f"s_waitcnt vmcnt({9 - s + WARM + min(8, UKP + s)})")
    mfma(48, vr(40 + 4*(s & 1), 4), vr(64+4*s, 4), "0" if s == 0 else None)
    if UKP + s < 8: ukdma(UKP + s)
lgk(0)
a(f"s_add_u32 s{E}, s{E}, {hex(GOLD)}")
a(f"s_lshl_b32 s59, s{E}, 2")
a(f"v_mov_b32 v211, s{E}")
a("s_nop 3")
a(f"ds_write_b128 v15, v[48:51] offset:{R0}")
stamp(3)
fstamp(3, 3)
lgk(0)
a("s_barrier")
fstamp(4, 3)
def qp_pub():
    a("s_mov_b32 exec_hi, 0")
    for w in range(4):
        a(f"ds_read_b128 v[{64+4*w}:{67+4*w}], v204 offset:{R0+512*w}")
    lgk(0)
    sum4x4(60, 64)
    tag(range(60, 64))
    a("buffer_store_dwordx4 v[60:63], v204, s[24:27], s54 offen")
    a("s_mov_b32 exec_hi, -1")
only_wave0(qp_pub)
fstamp(5, 3)
def qp_B():
    def f():
        a("s_mov_b32 exec_hi, 0")
        a("buffer_store_dwordx4 v[60:63], v204, s[24:27], s55 offen sc1")
        a("s_mov_b32 exec_hi, -1")
    only_wave0(f)
def flag8(soff):
    a("s_mov_b64 exec, 0xff")
    a(f"buffer_store_dword v211, v210, s[24:27], s{soff} offen sc1")
    a("s_mov_b64 exec, -1")
def quad_flag(soff, every=False):
    l = newlab("QF")
    if every: a(f"s_cmp_lg_u32 s{WV}, 0")
    else: a(f"s_or_b32 s7, s{WV}, s5"); a("s_cmp_lg_u32 s7, 0")
    a(f"s_cbranch_scc1 {l}")
    flag8(soff)
    a.label(l)
a("s_waitcnt vmcnt(1)")
a(f"s_cmp_eq_u32 s{WV}, 0"); a("s_cbranch_scc1 X_UKW"); a("s_waitcnt vmcnt(0)"); a.label("X_UKW")
for T in range(2):
    for s in range(4):
        a(f"ds_read_b128 v[{128+16*T+4*s}:{131+16*T+4*s}], v{200+s} offset:{UKL+256*T}")
stamp(4)
fstamp(6, 3)
def iss(k):
    for p in range(4):
        a(f"buffer_load_dwordx2 v[{64+2*p}:{65+2*p}], v205, s[24:27], s{56+k} offen offset:{512*p} sc1")
dual_poll(iss, lambda: tagcheck(list(range(64, 72)), 9), qp_B)
stamp(5)
fstamp(7, 3)
if OPT["fl2pos"] == 0: quad_flag(64, OPT["fall"])
pk("add", 64, 64, 66); pk("add", 68, 68, 70); pk("add", 64, 64, 68)
a("v_cvt_pk_bf16_f32 v64, v64, v65")
a(f"ds_write_b32 v206, v64 offset:{QB}")
lgk(0)
for s in range(4):
    a(f"ds_read_b128 v[{64+4*s}:{67+4*s}], v207 offset:{QB+64*s}")
fstamp(8, 3)
if OPT["fl2pos"] == 1: quad_flag(64, OPT["fall"])
for s in range(4):
    lgk(3-s)
    for T in range(2):
        mfma(48 + 4*T, vr(64+4*s, 4), vr(128+16*T+4*s, 4), "0" if s == 0 else None)
fstamp(9, 3)
a("s_nop 7")
a("v_cvt_pk_bf16_f32 v56, v48, v52")
a(f"ds_write_b32 v208, v56 offset:{QG}")
if OPT["fl2pos"] == 2: quad_flag(64, OPT["fall"])
fstamp(10, 3)
lgk(0)
a("s_barrier")
fstamp(11, 3)
def qa_pub():
    a("s_mov_b64 exec, 0xffff")
    a(f"ds_read_b128 v[64:67], v204 offset:{QG}")
    lgk(0)
    a("buffer_store_dwordx4 v[64:67], v204, s[24:27], s60 offen sc1")
    a(f"v_add3_u32 v68, v64, v65, s{E}"); a("v_add3_u32 v68, v66, v67, v68")
    a("buffer_store_dword v68, v209, s[24:27], s61 offen sc1")
    a("s_mov_b64 exec, -1")
only_wave0(qa_pub)
fstamp(12, 3)
if OPT["fl2pos"] == 3: quad_flag(64, OPT["fall"])
stamp(6)
qp_B()
a(f"v_lshlrev_b32 v9, 13, v{G}"); a(f"v_lshl_add_u32 v17, v{I}, 4, v9")
a("s_lshl_b32 s6, s5, 7"); a(f"s_lshl_b32 s7, s{WV}, 2"); a("s_add_u32 s6, s6, s7"); a("s_lshl_b32 s6, s6, 13"); a("s_add_u32 s61, s6, s53")
a(f"v_lshrrev_b32 v9, 1, v{G}"); a(f"v_and_b32 v10, 1, v{G}"); a("v_lshlrev_b32 v9, 2, v9"); a("v_add_u32 v9, v9, v10")
a("v_mul_u32_u24 v9, 2560, v9"); a(f"v_lshl_add_u32 v18, v{I}, 4, v9")
a("s_lshl_b32 s6, s4, 7"); a("s_and_b32 s7, s5, 1"); a("s_lshl_b32 s7, s7, 6"); a("s_add_u32 s6, s6, s7")
a("s_lshr_b32 s7, s5, 1"); a("s_lshl_b32 s7, s7, 2"); a("s_add_u32 s6, s6, s7"); a(f"s_lshl_b32 s7, s{WV}, 4"); a("s_add_u32 s6, s6, s7")
a("s_mul_i32 s57, s6, 1280")
if OPT["lgate"]:
    a("s_and_b32 s7, s2, 7"); a("s_lshl_b32 s7, s7, 12"); a(f"s_add_u32 s63, s7, {FL2}")
    a(f"v_lshlrev_b32 v9, 7, v{L}")
    a("s_mov_b32 exec_hi, 0")
    hint_poll(9, 63, 10)
    a("s_mov_b32 exec_hi, -1")
loads = []
for s in range(8):
    loads.append([f"buffer_load_dwordx4 v[{128+4*s}:{131+4*s}], v17, s[32:35], s61 offen {NT}"] + ([f"s_add_u32 s61, s61, {16*8192}"] if s < 7 else []))
for k in range(10):
    s, cb = divmod(k, 5); r = 160 + 20*s + 4*cb
    loads.append([f"buffer_load_dwordx4 v[{r}:{r+3}], v18, s[36:39], s57 offen offset:{1280*s+256*cb} {NT}"])
WA = 0 if OPT["nolate"] else OPT["woaft"]
after = loads[len(loads)-WA:]; loads = loads[:len(loads)-WA]
for k, ld in enumerate(loads):
    if OPT["nolate"]: break
    for x in ld: a(x)
    if OPT["lw"] and OPT["lw"] - 1 <= k < len(loads) - 1: a(f"s_waitcnt vmcnt({OPT['lw']-1})")
a(f"v_lshlrev_b32 v9, 9, v{I}")
a("s_lshr_b32 s6, s4, 4"); a("s_lshl_b32 s6, s6, 15"); a("s_and_b32 s7, s4, 15"); a("s_lshl_b32 s7, s7, 5"); a("s_add_u32 s6, s6, s7")
a(f"s_lshl_b32 s7, s{WV}, 13"); a("s_add_u32 s6, s6, s7"); a(f"s_add_u32 s54, s6, {REC}")
a(f"v_lshlrev_b32 v10, 10, v{G}"); a(f"v_lshl_add_u32 v10, v{I}, 4, v10")
a(f"v_lshlrev_b32 v11, 8, v{G}"); a(f"v_lshl_add_u32 v11, v{I}, 2, v11")
a("s_lshl_b32 s6, s58, 2"); a(f"s_add_u32 s6, s6, s{WV}"); a("s_lshl_b32 s7, s6, 12"); a(f"s_add_u32 s55, s7, {OP}")
a("s_lshl_b32 s7, s6, 10"); a(f"s_add_u32 s56, s7, {OC}")
a(f"s_lshl_b32 s7, s{WV}, 6"); a(f"v_lshl_add_u32 v12, v{I}, 2, s7"); a(f"v_lshl_add_u32 v13, v{G}, 4, s7")
a(f"s_lshl_b32 s7, s{WV}, 2"); a("v_mov_b32 v16, s7"); a("v_mov_b32 v19, 0")
a(f"s_lshl_b32 s7, s{WV}, 7"); a(f"v_lshl_add_u32 v20, v{G}, 5, s7")
a("s_lshl_b32 s6, s4, 13"); a("s_lshl_b32 s7, s5, 2"); a(f"s_add_u32 s7, s7, s{WV}"); a("s_lshl_b32 s7, s7, 9"); a("s_add_u32 s7, s7, s6")
a(f"s_add_u32 s60, s7, {CXA}"); a(f"s_add_u32 s61, s7, {CXB}")
a("s_lshl_b32 s7, s5, 7"); a("s_add_u32 s6, s6, s7"); a(f"s_lshl_b32 s7, s{WV}, 5"); a("s_add_u32 s6, s6, s7")
a(f"s_add_u32 s62, s6, {CXA}"); a(f"s_add_u32 s63, s6, {CXB}")
a(f"v_lshlrev_b32 v21, 9, v{I}"); a(f"v_lshl_add_u32 v21, v{G}, 3, v21")
red640_setup(22, 23, 66, SP, 58)
if WARM: a("buffer_load_dwordx2 v[64:65], v21, s[24:27], s62 offen")
stamp(8)
a("s_mov_b64 exec, 0xffff")
a.label("X_RP")
a("buffer_load_dwordx4 v[32:35], v9, s[24:27], s54 offen sc1")
spend("X_RD")
a("s_waitcnt vmcnt(0)")
a(f"v_cmp_ne_u32 vcc, s{E}, v34")
a("s_cbranch_vccnz X_RP")
a.label("X_RD")
fstamp(0, 2)
a("s_mov_b64 exec, -1")
stamp(9)
def iss3():
    for s in range(4):
        a(f"buffer_load_dwordx4 v[{64+4*s}:{67+4*s}], v10, s[24:27], s55 offen offset:{256*s} sc1")
    for s in range(4):
        a(f"buffer_load_dword v{80+s}, v11, s[24:27], s56 offen offset:{64*s} sc1")
iss3()
for ld in after:
    for x in ld: a(x)
a("s_mov_b64 exec, 0xffff")
a("v_mov_b32 v36, v32")
for ror in (8, 4, 2, 1):
    a("s_nop 1"); a(f"v_max_f32_dpp v36, v36, v36 row_ror:{ror} row_mask:0xf bank_mask:0xf")
a("v_sub_f32 v32, v32, v36")
a("v_exp_f32 v32, v32")
a(f"ds_write_b32 v16, v36 offset:{ML}")
a("v_mul_f32 v37, v32, v33")
a("v_cvt_pk_bf16_f32 v32, v32, v32")
a(f"ds_write_b32 v12, v32 offset:{AL}")
for ror in (8, 4, 2, 1):
    a("s_nop 1"); a(f"v_add_f32_dpp v37, v37, v37 row_ror:{ror} row_mask:0xf bank_mask:0xf")
a(f"ds_write_b32 v16, v37 offset:{ML+16}")
a("s_mov_b64 exec, -1")
lgk(0)
a(f"ds_read_b128 v[32:35], v13 offset:{AL}")
a("s_barrier")
a(f"ds_read_b128 v[40:43], v19 offset:{ML}"); a(f"ds_read_b128 v[44:47], v19 offset:{ML+16}")
lgk(2)
for s in range(4):
    selA(96 + 4*s, 32 + s)
lgk(0)
a("v_max3_f32 v36, v40, v41, v42"); a("v_max_f32 v36, v36, v43")
for w in range(4): a(f"v_sub_f32 v{40+w}, v{40+w}, v36")
for w in range(4): a(f"v_exp_f32 v{40+w}, v{40+w}")
a("s_nop 0")
pk("mul", 44, 44, 40); pk("mul", 46, 46, 42); pk("add", 44, 44, 46); a("v_add_f32 v36, v44, v45")
a("v_rcp_f32 v36, v36")
a("s_nop 0")
pk("mul", 24, 40, 36, "op_sel_hi:[1,0]"); pk("mul", 26, 42, 36, "op_sel_hi:[1,0]")
fstamp(1, 2)
a(f"s_waitcnt vmcnt({WA})")
a.label("X_OP")
fstamp(2, 2)
for s in range(4):
    mfma(48, vr(96+4*s, 4), vr(64+4*s, 4), "0" if s == 0 else None)
cwcheck(64, 80, 38, 39)
a("s_cbranch_vccz X_OD")
spend("X_OD")
iss3()
a("s_waitcnt vmcnt(0)")
a("s_branch X_OP")
a.label("X_OD")
a(f"ds_write_b128 v15, v[48:51] offset:{R1}")
stamp(10)
fstamp(3, 2)
lgk(0)
a("s_barrier")
fstamp(4, 2)
for p in range(4):
    a(f"ds_read_b128 v[{64+8*p}:{67+8*p}], v20 offset:{R1+512*p}"); a(f"ds_read_b128 v[{68+8*p}:{71+8*p}], v20 offset:{R1+512*p+16}")
for p in range(4):
    lgk(6 - 2*p)
    f = 24 + (p & 2); sel = "op_sel_hi:[1,0" if p % 2 == 0 else "op_sel:[0,1"
    for k in range(0, 8, 2):
        if p == 0: a(f"v_pk_mul_f32 v[{64+k}:{65+k}], v[{64+k}:{65+k}], v[{f}:{f+1}] op_sel_hi:[1,0]")
        else: a(f"v_pk_fma_f32 v[{64+k}:{65+k}], v[{64+8*p+k}:{65+8*p+k}], v[{f}:{f+1}], v[{64+k}:{65+k}] " + (f"op_sel_hi:[1,0,1]" if p % 2 == 0 else "op_sel:[0,1,0]"))
fstamp(5, 2)
a("v_cvt_pk_bf16_f32 v64, v64, v64")
selA(40, 64)
for s in range(8):
    if s < 7:
        a(f"v_cvt_pk_bf16_f32 v{65+s}, v{65+s}, v{65+s}")
        selA(40 + 4*((s+1) & 1), 65 + s)
    else:
        a("s_nop 0")
    mfma(48, vr(40 + 4*(s & 1), 4), vr(128+4*s, 4), "0" if s == 0 else None)
fstamp(6, 2)
a("s_nop 6")
a("s_mov_b32 exec_hi, 0")
for r in range(4):
    a(f"v_bfi_b32 v{60+r}, v{VFF}, s{E}, v{48+r}")
a("buffer_store_dwordx4 v[60:63], v204, s[24:27], s60 offen")
a("s_mov_b32 exec_hi, -1")
stamp(11)
fstamp(7, 2)
def cx_B():
    a("s_mov_b32 exec_hi, 0")
    a("buffer_store_dwordx4 v[60:63], v204, s[24:27], s61 offen sc1")
    a("s_mov_b32 exec_hi, -1")
dual_poll(lambda k: a(f"buffer_load_dwordx2 v[64:65], v21, s[24:27], s{62+k} offen sc1"), lambda: tagcheck([64, 65], 9), cx_B)
stamp(12)
fstamp(8, 2)
if OPT["flspos"] == 0: quad_flag(65)
for ror in (8, 4, 2, 1):
    a(f"v_add_f32_dpp v64, v64, v64 row_ror:{ror} row_mask:0xf bank_mask:0xf")
    a(f"v_add_f32_dpp v65, v65, v65 row_ror:{ror} row_mask:0xf bank_mask:0xf")
    if ror > 1: a("s_nop 0")
a("v_cvt_pk_bf16_f32 v64, v64, v64"); a("v_cvt_pk_bf16_f32 v65, v65, v65")
selA(40, 64); selA(44, 65)
fstamp(9, 2)
a("s_nop 0")
for cb in range(5):
    for s in range(2):
        mfma(96 + 4*cb, vr(40+4*s, 4), vr(160+20*s+4*cb, 4), "0" if s == 0 else None)
fstamp(10, 2)
if OPT["flspos"] == 1: quad_flag(65)
a("s_nop 1")
for cb in range(5):
    if cb >= 3: a("s_nop 1")
    a(f"ds_write_b128 v22, v[{96+4*cb}:{99+4*cb}] offset:{R3+512*cb}")
fstamp(11, 2)
if OPT["flspos"] == 2: quad_flag(65)
red640_finish(R3, 23, 66)
fstamp(12, 2)
if OPT["flspos"] == 3: quad_flag(65)
stamp(13)
cx_B()
dump_stamps(16)
a("s_endpgm")

a.label("L_Y")
CK = 0; QL = 131072; PL = QL + 16384; MX = PL + 4096; LS = MX + 256
RG = 0; YR = 8192; FR = 20480
LDS_BYTES = LS + 1024
XF = 56
load_srd(a, 12, "ckv")
a("s_sub_u32 s60, s2, 128")
a("s_and_b32 s61, s60, 7"); a("s_lshr_b32 s62, s60, 4"); a("s_lshl_b32 s62, s62, 3"); a("s_or_b32 s61, s61, s62")
a("s_bfe_u32 s62, s60, 0x10003")
for k in range(8):
    a(f"v_xor_b32 v{62+k}, {2*k}, v{L}"); a(f"v_lshlrev_b32 v{62+k}, 4, v{62+k}")
a("s_lshl_b32 s6, s61, 17"); a(f"s_lshl_b32 s7, s{WV}, 15"); a("s_add_u32 s6, s6, s7")
a("s_lshl_b32 s53, s62, 14"); a("s_add_u32 s6, s6, s53"); a("s_lshl_b32 s53, s53, 1")
lgk(0)
x_loads(12, 40, 52)
a(f"s_load_dword s{E}, s[24:25], {EP}")
load_srd(a, 16, "wd"); load_srd(a, 20, "out"); load_srd(a, 28, "wg"); load_srd(a, 32, "wu")
for k in range(32):
    a("s_mov_b32 m0, s7")
    a("s_add_u32 s7, s7, 1024")
    if not OPT["nockv"]: a(f"buffer_load_dwordx4 v{62+(k&7)}, s[12:15], s6 offen {NTC} lds")
    a("s_add_u32 s6, s6, 1024")
    if k == 15: a("s_sub_u32 s6, s6, s53")
    if k == OPT["lnpos"] - 1:
        n = 0 if OPT["nockv"] else k + 1
        masks(9, 10)
        ln(12, 40, 20, n + 2, n)
        a(f"v_cmp_lt_u32 vcc, 7, v{I}")
        a(f"v_and_b32 v9, 1, v{G}"); a("v_lshlrev_b32 v9, 4, v9"); a(f"v_lshl_add_u32 v14, v{I}, 5, v9")
        for s in range(5):
            a(f"v_cndmask_b32 v{XF+s}, v{20+s}, v{25+s}, vcc")
    W = OPT["yw1"] if k < 15 else OPT["yw2"]
    if W and k >= W - 1 and k < 31: a(f"s_waitcnt vmcnt({W-1})")
stamp(2)
a(f"v_and_b32 v9, 7, v{I}"); a("v_lshlrev_b32 v9, 1, v9"); a(f"v_xor_b32 v9, v9, v{G}"); a("v_lshlrev_b32 v9, 4, v9"); a(f"v_lshl_add_u32 v9, v{I}, 10, v9")
a(f"s_lshl_b32 s7, s{WV}, 15"); a("v_add_u32 v20, s7, v9"); a(f"v_add_u32 v24, {QL}, v9")
for s in range(1, 4):
    a(f"v_xor_b32 v{20+s}, {64*s}, v20"); a(f"v_xor_b32 v{24+s}, {64*s}, v24")
a(f"v_bfe_u32 v9, v{L}, 2, 2"); a(f"v_lshl_add_u32 v9, v{G}, 2, v9"); a("v_and_b32 v10, 7, v9"); a("v_lshlrev_b32 v10, 5, v10")
a("v_lshl_add_u32 v10, v9, 10, v10"); a(f"v_and_b32 v9, 3, v{L}"); a("v_lshl_add_u32 v10, v9, 3, v10")
a(f"s_lshl_b32 s7, s{WV}, 8"); a("v_add_u32 v28, s7, v10")
for T in range(1, 8):
    a(f"v_xor_b32 v{28+T}, {32*T}, v28")
a(f"s_and_b32 s7, s{WV}, 1"); a("s_lshl_b32 s7, s7, 3"); a(f"v_xor_b32 v9, s7, v{L}"); a("v_lshlrev_b32 v9, 4, v9")
a(f"s_lshl_b32 s7, s{WV}, 12"); a(f"s_add_u32 s7, s7, {QL}"); a("v_add_u32 v36, s7, v9")
for r in range(1, 4):
    a(f"v_xor_b32 v{36+r}, {32*r}, v36")
a(f"v_lshlrev_b32 v18, 4, v{L}"); a(f"v_lshlrev_b32 v17, 2, v{L}"); a(f"v_lshlrev_b32 v19, 7, v{L}")
a("s_lshl_b32 s6, s62, 2"); a(f"s_add_u32 s6, s6, s{WV}")
a("s_lshl_b32 s7, s6, 12"); a(f"s_add_u32 s54, s7, {QA}"); a("s_lshl_b32 s7, s6, 10"); a(f"s_add_u32 s55, s7, {QC}")
a("s_lshl_b32 s7, s6, 9"); a("s_and_b32 s6, s60, 7"); a("s_lshl_b32 s6, s6, 12"); a("s_add_u32 s7, s7, s6"); a(f"s_add_u32 s56, s7, {FL2}")
a(f"v_lshlrev_b32 v9, 4, v{I}"); a(f"v_add_u32 v10, {MX}, v9"); a(f"s_lshl_b32 s7, s{WV}, 2"); a("v_add_u32 v11, s7, v10")
a(f"v_lshlrev_b32 v9, 6, v{I}"); a(f"v_add_u32 v15, {LS}, v9"); a(f"s_lshl_b32 s7, s{WV}, 4"); a(f"v_lshl_add_u32 v16, v{G}, 2, s7"); a("v_add_u32 v16, v16, v15")
a(f"v_add_u32 v12, {PL}, v18"); a(f"s_lshl_b32 s7, s{WV}, 10"); a("v_add_u32 v13, s7, v12")
a(f"v_lshlrev_b32 v61, 18, v{G}"); a(f"v_lshl_add_u32 v61, v{I}, 4, v61"); a(f"v_lshlrev_b32 v62, 16, v{G}"); a(f"v_lshl_add_u32 v62, v{I}, 2, v62")
a("s_lshl_b32 s6, s62, 6"); a(f"s_add_u32 s6, s6, s{WV}"); a("s_lshl_b32 s6, s6, 6"); a("s_add_u32 s6, s6, s61")
a("s_lshl_b32 s7, s6, 8"); a(f"s_add_u32 s36, s7, {OP}"); a("s_lshl_b32 s7, s6, 6"); a(f"s_add_u32 s64, s7, {OC}")
for r in range(1, 4):
    a(f"s_add_u32 s{36+r}, s36, {r << 16}"); a(f"s_add_u32 s{64+r}, s64, {r << 14}")
a("s_lshl_b32 s6, s62, 6"); a("s_add_u32 s6, s6, s61"); a("s_lshl_b32 s6, s6, 9"); a(f"s_add_u32 s57, s6, {REC}")
a(f"v_lshlrev_b32 v63, 5, v{I}"); a(f"v_lshl_add_u32 v63, v{G}, 4, v63")
a(f"s_mov_b32 s52, {f32bits(128 ** -0.5)}"); a("s_mov_b32 s53, s52"); a(f"s_mov_b32 s58, {f32bits(LOG2E)}")
a("s_waitcnt vmcnt(16)")
for s in range(16):
    a(f"ds_read_b128 v[{128+4*s}:{131+4*s}], v{20+(s&3)} offset:{(s>>2)*256}")
a("s_waitcnt vmcnt(0)")
for s in range(16):
    a(f"ds_read_b128 v[{192+4*s}:{195+4*s}], v{20+(s&3)} offset:{16384+(s>>2)*256}")
stamp(3)
a(f"v_lshrrev_b32 v9, 3, v{I}"); a(f"v_lshl_add_u32 v9, v{G}, 1, v9"); a(f"v_mul_u32_u24 v9, {5*3456}, v9"); a(f"v_and_b32 v40, 7, v{I}"); a("v_lshl_add_u32 v55, v40, 4, v9")
a("s_mul_i32 s6, s51, 3456"); a("s_lshl_b32 s7, s4, 7"); a("s_add_u32 s63, s6, s7")
a("s_lshl_b32 s6, s4, 11"); a("s_lshl_b32 s7, s5, 9"); a("s_add_u32 s6, s6, s7"); a(f"s_lshl_b32 s7, s{WV}, 7"); a("s_add_u32 s6, s6, s7"); a(f"s_add_u32 s48, s6, {GPA}")
lgk(0)
a(f"s_add_u32 s{E}, s{E}, {hex(GOLD)}")
a(f"s_lshl_b32 s59, s{E}, 2")
a("s_barrier")
a("s_mov_b64 exec, 0xf")
hint_poll(19, 56, 40, OPT["fall"])
a("s_mov_b64 exec, -1")
stamp(4)
def qa_fetch():
    for r in range(4):
        a(f"buffer_load_dwordx4 v[{64+4*r}:{67+4*r}], v18, s[24:27], s54 offen offset:{1024*r} sc1")
    for r in range(4):
        a(f"buffer_load_dword v{80+r}, v17, s[24:27], s55 offen offset:{256*r} sc1")
qa_fetch()
def tr_all():
    for kg in range(4):
        if kg == 2:
            for t in range(8): a(f"v_add_u32 v{28+t}, 0x10000, v{28+t}")
        for T in range(8):
            for hf in range(2):
                off = (32*kg + 16*hf) * 1024 - (65536 if kg >= 2 else 0)
                r = 32*kg + 4*T + 2*hf
                a(f"ds_read_b64_tr_b16 a[{r}:{r+1}], v{28+T} offset:{off}")
NGU = 10 + WARM
if not OPT["nolate"]:
    a("s_cmp_ge_u32 s4, 27"); a("s_cbranch_scc1 Y_NOG")
    for s in range(5):
        a(f"buffer_load_dwordx4 a[{128+8*s}:{131+8*s}], v55, s[28:31], s63 offen {NT}")
        a(f"buffer_load_dwordx4 a[{132+8*s}:{135+8*s}], v55, s[32:35], s63 offen {NT}")
        if s < 4: a("s_add_u32 s63, s63, 3456")
    if WARM:
        a("s_mov_b64 exec, 1"); a("buffer_load_dword a188, v18, s[24:27], s48 offen"); a("s_mov_b64 exec, -1")
    tr_all()
    a(f"s_waitcnt vmcnt({NGU})")
    a("s_branch Y_QP")
    a.label("Y_NOG")
tr_all()
a("s_waitcnt vmcnt(0)")
a.label("Y_QP")
for r in range(4):
    a(f"ds_write_b128 v{36+r}, v[{64+4*r}:{67+4*r}] offset:{1024*r}")
cwcheck(64, 80, 9, 40)
a("s_cbranch_vccz Y_QD")
spend("Y_QD")
qa_fetch()
a("s_waitcnt vmcnt(0)")
a("s_branch Y_QP")
a.label("Y_QD")
stamp(5)
fstamp(0, 1)
lgk(0)
a("s_barrier")
fstamp(1, 1)
def score_ops(b):
    ops = []
    for rnd in range(2):
        for k in (0, 2): ops.append(f"v_cvt_pk_bf16_f32 v{48+k//2}, v{b+k}, v{b+k+1}")
        for k in (0, 2):
            ops.append(f"v_lshlrev_b32 v{b+k}, 16, v{48+k//2}"); ops.append(f"v_and_b32 v{b+k+1}, 0xffff0000, v{48+k//2}")
        if rnd == 0:
            for k in range(4): ops.append(f"v_mul_f32 v{b+k}, s52, v{b+k}")
    return ops
for s in range(8):
    a(f"ds_read_b128 v[{64+4*s}:{67+4*s}], v{24+(s&3)} offset:{(s>>2)*256}")
for s in range(16):
    lgk(7 if s <= 8 else 15 - s)
    mfma(40, vr(128+4*s, 4), vr(64+4*s, 4), "0" if s == 0 else None)
    if s < 8: a(f"ds_read_b128 v[{64+4*(s+8)}:{67+4*(s+8)}], v{24+(s&3)} offset:{((s+8)>>2)*256}")
fstamp(2, 1)
t0ops = score_ops(40) + ["v_max3_f32 v50, v40, v41, v42", "v_max_f32 v50, v50, v43"]
for s in range(16):
    mfma(44, vr(192+4*s, 4), vr(64+4*s, 4), "0" if s == 0 else None)
    if s < 3: a("s_nop 1")
    elif t0ops:
        a(t0ops.pop(0))
        if t0ops and s >= 8: a(t0ops.pop(0))
assert not t0ops
fstamp(3, 1)
a("s_nop 7")
sc = score_ops(44)
sc[6:10] = ["v_pk_mul_f32 v[44:45], v[44:45], s[52:53]", "v_pk_mul_f32 v[46:47], v[46:47], s[52:53]"]
for op in sc: a(op)
a("v_max3_f32 v50, v50, v44, v45"); a("v_max3_f32 v50, v50, v46, v47")
cross_rows(a, "v_max_f32", 50, 51)
fstamp(4, 1)
a("v_mul_f32 v50, s58, v50")
a("v_ceil_f32 v50, v50")
for k in range(8):
    a(f"v_fma_f32 v{40+k}, v{40+k}, s58, -v50")
a(f"v_mul_f32 v50, {f32bits(128.0)}, v50")
for k in range(8):
    a(f"v_exp_f32 v{40+k}, v{40+k}")
a("ds_write_b32 v11, v50")
for k in range(4):
    a(f"v_cvt_pk_bf16_f32 v{48+k}, v{40+2*k}, v{41+2*k}")
a("ds_write_b128 v13, v[48:51]")
pk("add", 40, 40, 42); pk("add", 44, 44, 46); pk("add", 40, 40, 44); a("v_add_f32 v40, v40, v41")
a("ds_write_b32 v16, v40")
stamp(6)
fstamp(5, 1)
lgk(0)
fstamp(6, 1)
a("s_barrier")
fstamp(7, 1)
a("ds_read_b128 v[48:51], v10")
for kg in range(4):
    a(f"ds_read_b128 v[{64+4*kg}:{67+4*kg}], v12 offset:{1024*kg}")
for w in range(4):
    a(f"ds_read_b128 v[{80+4*w}:{83+4*w}], v15 offset:{16*w}")
a(f"s_mov_b32 s42, {f32bits(-1/128)}")
lgk(8)
a("v_max3_f32 v52, v48, v49, v50"); a("v_max_f32 v52, v52, v51")
a("v_sub_f32 v40, v52, v48"); a("v_sub_f32 v41, v52, v49")
a("v_cvt_u32_f32 v44, v40"); a("v_cvt_u32_f32 v45, v41"); a("v_cvt_pk_u16_u32 v44, v44, v45")
def rescale(kg):
    sel = "op_sel_hi:[1,0]" if kg % 2 == 0 else "op_sel:[0,1]"
    return [f"v_pk_sub_u16 v{64+4*kg+k}, v{64+4*kg+k}, v{44+kg//2} {sel} clamp" for k in range(4)]
lgk(4)
for op in rescale(0): a(op)
a("v_sub_f32 v42, v52, v50"); a("v_sub_f32 v43, v52, v51")
fl = rescale(1) + ["v_cvt_u32_f32 v46, v42", "v_cvt_u32_f32 v47, v43", "v_cvt_pk_u16_u32 v45, v46, v47"] + rescale(2) + rescale(3)
fl += ["s_waitcnt lgkmcnt(0)"] + [f"v_mul_f32 v{40+w}, s42, v{40+w}" for w in range(4)] + [f"v_exp_f32 v{40+w}, v{40+w}" for w in range(4)]
for w in range(4): fl += [f"v_add_f32 v{80+4*w}, v{80+4*w}, v{81+4*w}", f"v_add_f32 v{82+4*w}, v{82+4*w}, v{83+4*w}"]
for w in range(4): fl += [f"v_add_f32 v{80+4*w}, v{80+4*w}, v{82+4*w}"]
fl += ["v_mul_f32 v53, v80, v40"] + [f"v_fmac_f32 v53, v{80+4*w}, v{40+w}" for w in range(1, 4)]
fl += ["v_mul_f32 v52, s42, v52", "v_sub_f32 v52, 0, v52", f"v_mov_b32 v54, s{E}"]
g = {}
for kg in range(3):
    for T in range(8):
        n = 1 if fl and fl[0].startswith("v_exp") else 2
        g[kg, T] = fl[:n]; fl = fl[n:]
g[3, 0] = fl
assert len(fl) <= 2, fl
cv = lambda k, r: f"v_cvt_pk_bf16_f32 v{128+4*r+k}, v{96+8*k+r}, v{100+8*k+r}"
g[3, 1] = ["s_nop 2"]; g[3, 2] = ["s_nop 2"]
g[3, 3] = [cv(0, 0), cv(0, 1), cv(0, 2)]; g[3, 4] = [cv(0, 3), "s_nop 1"]
g[3, 5] = [cv(1, 0), cv(1, 1), cv(1, 2)]; g[3, 6] = [cv(1, 3), "s_nop 1"]
g[3, 7] = [cv(2, r) for r in range(4)] + [f"v_add3_u32 v{144+r}, v{128+4*r}, v{129+4*r}, s{E}" for r in range(4)]
def rec_store():
    a("s_mov_b32 exec_hi, 0")
    a("buffer_store_dwordx4 v[52:55], v63, s[24:27], s57 offen sc1")
    a("s_mov_b32 exec_hi, -1")
nm = 0
assert OPT["reck"] >= 25
for kg in range(4):
    fstamp(8 + kg, 1)
    for T in range(8):
        mfma(96 + 4*T, vr(64+4*kg, 4), ar(32*kg + 4*T, 4), "0" if kg == 0 else None)
        nm += 1
        for op in g.get((kg, T), []): a(op)
        if nm == OPT["reck"]: only_wave0(rec_store)
fstamp(12, 1)
for r in range(4):
    a(cv(3, r))
    a(f"buffer_store_dwordx4 v[{128+4*r}:{131+4*r}], v61, s[24:27], s{36+r} offen sc1")
    a(f"v_add3_u32 v{144+r}, v{130+4*r}, v{131+4*r}, v{144+r}")
    a(f"buffer_store_dword v{144+r}, v62, s[24:27], s{64+r} offen sc1")
if OPT["reck"] > 32: only_wave0(rec_store)
stamp(7)
fstamp(13, 1)
if OPT["nolate"]: a("s_branch Y_NOF")
a("s_cmp_ge_u32 s4, 27"); a("s_cbranch_scc1 Y_NOF")
a(f"v_lshrrev_b32 v12, 3, v{I}"); a(f"v_and_b32 v13, 7, v{I}")
a("s_lshl_b32 s6, s4, 6"); a("s_lshl_b32 s7, s5, 4"); a("s_add_u32 s6, s6, s7"); a(f"s_lshl_b32 s7, s{WV}, 2"); a("s_add_u32 s6, s6, s7"); a("s_mul_i32 s53, s6, 1280")
a(f"v_mul_u32_u24 v17, 1280, v{G}"); a(f"v_lshl_add_u32 v17, v{I}, 4, v17")
for cb in range(5):
    a(f"buffer_load_dwordx4 v[{200+4*cb}:{203+4*cb}], v17, s[16:19], s53 offen offset:{256*cb} {NT}")
a(f"v_lshrrev_b32 v9, 1, v{G}"); a(f"v_and_b32 v10, 1, v{G}")
a("v_cmp_eq_u32 vcc, v9, v12")
a("v_lshlrev_b32 v9, 5, v13"); a("v_lshl_add_u32 v9, v10, 4, v9"); a("v_lshl_add_u32 v9, v12, 9, v9")
a(f"s_lshl_b32 s7, s{WV}, 10"); a("v_add_u32 v9, s7, v9")
a("v_add_u32 v11, 4096, v18")
a("v_cndmask_b32 v9, v11, v9, vcc")
a("s_lshl_b32 s6, s4, 11"); a("s_lshl_b32 s7, s5, 9"); a("s_add_u32 s7, s7, s6")
a(f"s_add_u32 s54, s7, {GPA}"); a(f"s_add_u32 s55, s7, {GPB}")
a("s_lshl_b32 s7, s5, 6"); a("s_add_u32 s6, s6, s7"); a(f"s_lshl_b32 s7, s{WV}, 4"); a("s_add_u32 s6, s6, s7")
a(f"s_add_u32 s56, s6, {GPA}"); a(f"s_add_u32 s57, s6, {GPB}")
a("v_lshlrev_b32 v11, 8, v13"); a(f"v_lshl_add_u32 v11, v{G}, 2, v11")
a("s_lshl_b32 s58, s4, 2"); a("s_add_u32 s58, s58, s5")
red640_setup(22, 23, 66, YP, 58)
for s in range(5):
    selA(40 + 4*(s & 1), XF + s)
    a("s_waitcnt vmcnt(13)")
    a("s_nop 0")
    mfma(48, vr(40 + 4*(s & 1), 4), ar(128+8*s, 4), "0" if s == 0 else None)
    mfma(52, vr(40 + 4*(s & 1), 4), ar(132+8*s, 4), "0" if s == 0 else None)
a("s_nop 7")
a(f"ds_write_b128 v9, v[48:51] offset:{RG}"); a(f"ds_write_b128 v9, v[52:55] offset:{RG+256}")
lgk(0)
a("s_barrier")
def gp_pub():
    a("s_mov_b32 exec_hi, 0")
    for p in range(8):
        a(f"ds_read_b128 v[{64+4*p}:{67+4*p}], v18 offset:{RG+512*p}")
    lgk(0)
    sum4x4(64, 64); sum4x4(80, 80)
    pk("add", 60, 64, 80); pk("add", 62, 66, 82)
    tag(range(60, 64))
    a("buffer_store_dwordx4 v[60:63], v18, s[24:27], s54 offen")
    a("s_mov_b32 exec_hi, -1")
only_wave0(gp_pub)
def gp_B():
    def f():
        a("s_mov_b32 exec_hi, 0")
        a("buffer_store_dwordx4 v[60:63], v18, s[24:27], s55 offen sc1")
        a("s_mov_b32 exec_hi, -1")
    only_wave0(f)
dual_poll(lambda k: a(f"buffer_load_dword v64, v11, s[24:27], s{56+k} offen sc1"), lambda: tagcheck([64], 9), gp_B)
stamp(8)
def fly():
    a("s_lshl_b32 s7, s58, 7"); a(f"s_add_u32 s7, s7, {FLY}")
    a(f"v_mov_b32 v10, s{E}"); a("v_mov_b32 v9, 0")
    a("s_mov_b64 exec, 1")
    a("buffer_store_dword v10, v9, s[24:27], s7 offen sc1")
    a("s_mov_b64 exec, -1")
only_wave0(fly)
a("v_add_f32_dpp v64, v64, v64 row_ror:2 row_mask:0xf bank_mask:0xf")
a("s_nop 1")
a("v_add_f32_dpp v64, v64, v64 row_ror:4 row_mask:0xf bank_mask:0xf")
bfround(64)
a("s_nop 1")
a("v_mov_b32_dpp v65, v64 quad_perm:[1,1,3,3] row_mask:0xf bank_mask:0xf")
a("v_mov_b32_dpp v64, v64 quad_perm:[0,0,2,2] row_mask:0xf bank_mask:0xf")
k0 = math.sqrt(2/math.pi); k1 = 0.044715
a("v_mul_f32 v66, v64, v64"); a(f"v_mov_b32 v67, {f32bits(k1)}"); a("v_fma_f32 v66, v66, v67, 1.0"); a("v_mul_f32 v66, v66, v64")
a(f"v_mul_f32 v66, {f32bits(-2*k0*LOG2E)}, v66")
a("v_exp_f32 v66, v66"); a("s_nop 0"); a("v_add_f32 v66, 1.0, v66"); a("v_rcp_f32 v66, v66"); a("s_nop 0")
a("v_mul_f32 v64, v64, v66"); bfround(64)
a("v_mul_f32 v64, v64, v65"); a("v_cvt_pk_bf16_f32 v64, v64, v64")
selA(40, 64)
a("s_nop 1")
for cb in range(5):
    mfma(96 + 4*cb, vr(40, 4), vr(200+4*cb, 4), "0")
a("s_nop 7")
for cb in range(5):
    a(f"ds_write_b128 v22, v[{96+4*cb}:{99+4*cb}] offset:{YR+512*cb}")
red640_finish(YR, 23, 66)
gp_B()
a.label("Y_NOF")
stamp(9)
a("s_cmp_ge_u32 s60, 40"); a("s_cbranch_scc1 Y_FIN")
a("v_lshlrev_b32 v12, 1, v0"); a("s_lshl_b32 s58, s60, 5")
a("buffer_load_ushort v40, v12, s[8:11], s58 offen")
a("v_and_b32 v9, 3, v0"); a("v_lshrrev_b32 v10, 2, v0"); a("v_lshlrev_b32 v13, 4, v9")
a("v_mul_u32_u24 v14, 2560, v10"); a("v_add_u32 v14, v14, v13")
a("v_add_u32 v15, 64, v10")
a("v_min_u32 v16, 107, v15"); a("v_mul_u32_u24 v16, 2560, v16"); a("v_add_u32 v16, v16, v13")
a("v_cmp_gt_u32 s[44:45], 44, v10")
a(f"s_lshl_b32 s7, s{WV}, 4"); a(f"v_lshl_add_u32 v18, v{G}, 6, v{I}"); a("v_add_u32 v18, s7, v18")
a("v_min_u32 v18, 107, v18"); a("v_lshlrev_b32 v18, 7, v18")
a(f"v_lshrrev_b32 v17, 2, v{L}"); a("v_lshl_add_u32 v17, v17, 4, v9"); a("v_lshlrev_b32 v17, 7, v17")
a("s_and_b32 s6, s60, 7"); a("s_lshl_b32 s6, s6, 12"); a(f"s_lshl_b32 s7, s{WV}, 9"); a("s_add_u32 s6, s6, s7"); a(f"s_add_u32 s53, s6, {FLS}")
a("s_lshl_b32 s6, s60, 6"); a(f"s_add_u32 s54, s6, {YP}"); a(f"s_add_u32 s55, s6, {SP}"); a(f"s_add_u32 s56, s55, {64*2560}")
a(f"s_mov_b32 s52, {FLY}")
a(f"v_and_b32 v11, 1, v{G}"); a("v_lshlrev_b32 v11, 3, v11"); a(f"v_lshrrev_b32 v15, 1, v{G}"); a("v_lshl_add_u32 v11, v15, 2, v11"); a("v_add_u32 v13, v13, v11")
a(f"s_lshl_b32 s7, s{WV}, 6"); a("v_add_u32 v13, s7, v13")
a("v_lshlrev_b32 v11, 2, v0")
def red4(b):
    a(f"v_permlane32_swap_b32 v{b}, v{b+1}"); a(f"v_permlane32_swap_b32 v{b+2}, v{b+3}")
    a(f"v_add_f32 v{b}, v{b}, v{b+1}"); a(f"v_add_f32 v{b+2}, v{b+2}, v{b+3}")
    a("s_nop 1")
    a(f"v_permlane16_swap_b32 v{b}, v{b+2}")
    a(f"v_add_f32 v{b}, v{b}, v{b+2}")
    for ror in (8, 4):
        a("s_nop 1"); a(f"v_add_f32_dpp v{b}, v{b}, v{b} row_ror:{ror} row_mask:0xf bank_mask:0xf")
if OPT["nolate"]: a("s_branch Y_YG")
a("s_mov_b32 exec_hi, 0")
hint_poll(18, 52, 19)
a("s_mov_b32 exec_hi, -1")
a.label("Y_YF")
a("buffer_load_dwordx4 v[64:67], v14, s[24:27], s54 offen sc1")
a("buffer_load_dwordx4 v[68:71], v16, s[24:27], s54 offen sc1")
spend("Y_YG")
a("s_waitcnt vmcnt(0)")
tagcheck(list(range(64, 72)), 19)
a("s_cbranch_vccnz Y_YF")
a.label("Y_YG")
stamp(10)
for r in range(4):
    a(f"v_cndmask_b32 v{68+r}, 0, v{68+r}, s[44:45]")
pk("add", 24, 64, 68); pk("add", 26, 66, 70)
a("s_nop 1")
red4(24)
a(f"ds_write_b32 v13, v24 offset:{FR+256}")
lgk(0)
a("s_barrier")
def silu_part():
    for w in range(4):
        a(f"ds_read_b32 v{24+w}, v11 offset:{FR+256+64*w}")
    lgk(0)
    a("v_add_f32 v24, v24, v25"); a("v_add_f32 v26, v26, v27"); a("v_add_f32 v24, v24, v26")
    bfround(24)
    a(f"v_mul_f32 v25, {f32bits(-LOG2E)}, v24")
    a("v_exp_f32 v25, v25"); a("s_nop 0"); a("v_add_f32 v25, 1.0, v25"); a("v_rcp_f32 v25, v25"); a("s_nop 0")
    a("v_mul_f32 v28, v24, v25"); bfround(28)
    a("v_lshlrev_b32 v40, 16, v40")
only_wave0(silu_part)
a("s_mov_b64 exec, 0xff")
hint_poll(17, 53, 19)
a("s_mov_b64 exec, -1")
stamp(11)
a.label("Y_SF")
a("buffer_load_dwordx4 v[64:67], v14, s[24:27], s55 offen sc1")
a("buffer_load_dwordx4 v[68:71], v14, s[24:27], s56 offen sc1")
spend("Y_SG")
a("s_waitcnt vmcnt(0)")
pk("add", 20, 64, 68); pk("add", 22, 66, 70)
tagcheck(list(range(64, 72)), 19)
a("s_cbranch_vccnz Y_SF")
a.label("Y_SG")
red4(20)
a(f"ds_write_b32 v13, v20 offset:{FR}")
stamp(12)
lgk(0)
a("s_barrier")
a(f"s_cmp_lg_u32 s{WV}, 0"); a("s_cbranch_scc1 Y_FIN")
a("s_mov_b64 exec, 0xffff")
for w in range(4):
    a(f"ds_read_b32 v{20+w}, v11 offset:{FR+64*w}")
lgk(0)
a("v_add_f32 v20, v20, v21"); a("v_add_f32 v22, v22, v23"); a("v_add_f32 v20, v20, v22")
bfround(20)
a("v_mul_f32 v20, v20, v28"); bfround(20)
a("v_add_f32 v20, v20, v40")
a("v_cvt_pk_bf16_f32 v20, v20, v20")
a("buffer_store_short v20, v12, s[20:23], s58 offen")
a("s_cmp_lg_u32 s60, 0"); a("s_cbranch_scc1 Y_FIN")
a(f"v_mov_b32 v10, s{E}"); a("v_mov_b32 v9, 0")
a("s_mov_b64 exec, 1")
a(f"buffer_store_dword v10, v9, s[24:27], 0 offen offset:{EP} sc1")
a.label("Y_FIN")
stamp(13)
dump_stamps(16)
a.label("L_END")
a("s_endpgm")

hdr = open("recurrent_scan__compressed_kv_cla__geglu_ffn__decode.s.ref").read().split("\n")
hdr = [l for l in hdr if l.startswith(";") and "@launch" not in l]
txt = "\n".join(hdr) + f"\n; @launch grid=(256,1,1) block=(256,1,1) lds={LDS_BYTES}\n"
txt += f'.amdgcn_target "amdgcn-amd-amdhsa--gfx950"\n.text\n.globl {NAME}\n.p2align 8\n.type {NAME},@function\n{NAME}:\n' + a.text()
txt += '.section .rodata,"a"\n.p2align 6\n' + kernel_desc(NAME, 448, 256, 102)
open(sys.argv[1], "w").write(txt)
```

```python
import sys, math, json
sys.path.insert(0, "work")
from asmlib import *

OPT = dict(stamps=0, nt="", ntc="", pollA=6, budget=40000, ukpre=0, yw1=0, yw2=0, lw=0, fw=0, lnpos=10,
           reck=32, fl2pos=0, flspos=0, fall=0, hintmax=24, nolate=0, nockv=0, lgate=0, fine=0, warm=1, woaft=5, ckpre=0, gupos=4, ywin=[], xbar=1, ukln=[0,0,0], ckln=[0,0,0], pf=0, order=0, pregate=0, early=1, cpf=0, hwarm=1, hrot=0, ukaft=0, pretr=1, ckq=[2,2,2,2,2], lg2=0, sigk=20)
for kv in sys.argv[2:]:
    k, v = kv.split("=", 1)
    assert k in OPT, k
    OPT[k] = json.loads(v) if v[:1] in "[0123456789" else v
NT = OPT["nt"]; NTC = OPT["ntc"]

EP = 0x000000
FL2 = 0x001000
FLS = 0x009000
FLY = 0x011000
QA = 0x018000
QC = 0x020000
QPA, QPB = 0x480000, 0x4A0000
GPA, GPB = 0x050000, 0x060000
CXA, CXB = 0x070000, 0x0B0000
REC = 0x0F0000
YP = 0x100000
SP = 0x150000
OP = 0x200000
OC = 0x400000
DBG = 0x600000
GOLD = 0x9E3779B9
LOG2E = math.log2(math.e)

L, I, G = 1, 2, 3
MK = 4
VFF = 8
WV = 3
E = 40
BUD = 41
a = Asm()
def fstamp(k, role):
    if OPT["fine"] == role:
        a(f"s_memtime s[{68+2*k}:{69+2*k}]")
def stamp(k):
    if OPT["stamps"] == 2:
        a(f"s_mov_b32 s{68+2*k}, s{BUD}")
    elif OPT["stamps"] == 3 and k not in (0, 13): pass
    elif OPT["stamps"] and not OPT["fine"]:
        a(f"s_memrealtime s[{68+2*k}:{69+2*k}]")
def dump_stamps(n):
    if not OPT["stamps"]: return
    a("s_mov_b64 exec, -1")
    a("s_waitcnt lgkmcnt(0)")
    for k in range(n):
        a(f"v_mov_b32 v{16+k}, s{68+2*k}")
    a("s_lshl_b32 s6, s2, 2"); a(f"s_add_u32 s6, s6, s{WV}"); a("s_lshl_b32 s6, s6, 6"); a(f"s_add_u32 s6, s6, {DBG}")
    a("v_mov_b32 v9, 0")
    a("s_mov_b64 exec, 1")
    for k in range(0, n, 4):
        a(f"buffer_store_dwordx4 v[{16+k}:{19+k}], v9, s[24:27], s6 offen offset:{4*k}")
def dump_min():
    pass
def lgk(n):
    a(f"s_waitcnt lgkmcnt({n})")

def masks(t0, t1):
    a(f"v_and_b32 v{t0}, 1, v{I}")
    a(f"v_lshlrev_b32 v{t0}, 4, v{t0}")
    a(f"v_mov_b32 v{t1}, 0xffff")
    a(f"v_lshlrev_b32 v{t0}, v{t0}, v{t1}")
    a(f"v_bfe_u32 v{t1}, v{I}, 1, 2")
    for r in range(4):
        a(f"v_cmp_eq_u32 s[{42+2*r}:{43+2*r}], {r}, v{t1}")
    a(f"v_mov_b32 v{VFF}, 0xff")
    for r in range(4):
        a(f"v_cndmask_b32 v{MK+r}, 0, v{t0}, s[{42+2*r}:{43+2*r}]")
def selA(dst, dup):
    for r in range(4):
        a(f"v_and_b32 v{dst+r}, v{dup}, v{MK+r}")
def bfround(v):
    a(f"v_cvt_pk_bf16_f32 v{v}, v{v}, v{v}")
    a(f"v_and_b32 v{v}, 0xffff0000, v{v}")
def mfma(d, A, B, C=None):
    a(f"v_mfma_f32_16x16x32_bf16 v[{d}:{d+3}], {A}, {B}, " + (f"v[{d}:{d+3}]" if C is None else C))
def pk(op, d, x, y, mod=""):
    a(f"v_pk_{op}_f32 v[{d}:{d+1}], v[{x}:{x+1}], v[{y}:{y+1}] {mod}".rstrip())
def sum4x4(d, b):
    pk("add", b, b, b+4); pk("add", b+2, b+2, b+6); pk("add", b+8, b+8, b+12); pk("add", b+10, b+10, b+14)
    pk("add", d, b, b+8); pk("add", d+2, b+2, b+10)
def tag(regs):
    for r in regs:
        a(f"v_bfi_b32 v{r}, v{VFF}, s{E}, v{r}")
def tagcheck(regs, t):
    a(f"v_xor_b32 v{t}, s{E}, v{regs[0]}")
    for r in regs[1:]:
        a(f"v_bitop3_b32 v{t}, v{t}, v{r}, s{E} bitop3:0xf6")
    a(f"v_and_b32 v{t}, v{VFF}, v{t}")
    a(f"v_cmp_ne_u32 vcc, 0, v{t}")
def cwcheck(p, c, t0, t1):
    a(f"v_add3_u32 v{t0}, v{p}, v{p+1}, s59")
    a(f"v_add3_u32 v{t1}, v{c}, v{c+1}, v{c+2}")
    for k in range(p+2, p+16, 2):
        a(f"v_add3_u32 v{t0}, v{k}, v{k+1}, v{t0}")
    a(f"v_add_u32 v{t1}, v{t1}, v{c+3}")
    a(f"v_cmp_ne_u32 vcc, v{t0}, v{t1}")
def spend(giveup):
    a(f"s_sub_u32 s{BUD}, s{BUD}, 1")
    a(f"s_cmp_lt_i32 s{BUD}, 0")
    a(f"s_cbranch_scc1 {giveup}")
lab = [0]
def newlab(p):
    lab[0] += 1
    return f"{p}_{lab[0]}"
def only_wave0(fn):
    l = newlab("W0")
    a(f"s_cmp_lg_u32 s{WV}, 0"); a(f"s_cbranch_scc1 {l}")
    fn()
    a.label(l)
def dual_poll(issue, check, storeB):
    top, done = newlab("PA"), newlab("PD")
    a(f"s_mov_b32 s50, {OPT['pollA']}")
    a.label(top)
    issue(0)
    spend(done)
    a("s_waitcnt vmcnt(0)")
    check()
    a(f"s_cbranch_vccz {done}")
    a("s_sub_u32 s50, s50, 1")
    a(f"s_cbranch_scc0 {top}")
    storeB()
    a("s_mov_b32 s50, 0")
    issue(1)
    a("s_waitcnt vmcnt(0)")
    check()
    a(f"s_cbranch_vccnz {top}")
    a.label(done)
def hint_poll(vaddr, soff, t, wide=False):
    top, done = newlab("FP"), newlab("FD")
    a.label(top)
    if wide: a(f"buffer_load_dwordx4 v[{t}:{t+3}], v{vaddr}, s[24:27], s{soff} offen sc1")
    else: a(f"buffer_load_dword v{t}, v{vaddr}, s[24:27], s{soff} offen sc1")
    spend(done)
    a("s_waitcnt vmcnt(0)")
    if wide:
        a(f"v_xor_b32 v{t}, s{E}, v{t}")
        for r in range(1, 4): a(f"v_bitop3_b32 v{t}, v{t}, v{t+r}, s{E} bitop3:0xf6")
        a(f"v_cmp_ne_u32 vcc, 0, v{t}")
    else:
        a(f"v_cmp_ne_u32 vcc, s{E}, v{t}")
    a(f"s_cbranch_vccnz {top}")
    a.label(done)

def ln(raw, own, out, w1, w2, U=48, T=30, npair=5, hook=lambda k: 0):
    a(f"s_waitcnt vmcnt({w1})")
    stamp(1)
    for k in range(5): a(f"ds_bpermute_b32 v{own+k}, v10, v{raw+k}")
    m, v, t = T, T+2, T+4
    for k in range(5):
        a(f"v_lshlrev_b32 v{U+2*k}, 16, v{raw+k}"); a(f"v_and_b32 v{U+2*k+1}, 0xffff0000, v{raw+k}")
    pk("add", m, U, U+2); pk("add", v, U+4, U+6); pk("add", m, m, U+8); pk("add", m, m, v)
    a(f"v_add_f32 v{m}, v{m}, v{m+1}")
    wave_allreduce(a, "v_add_f32", m, m+1)
    w2 += hook(0)
    a(f"v_mul_f32 v{m}, {f32bits(-1/640)}, v{m}")
    for k in range(5):
        pk("add", U+2*k, U+2*k, m, "op_sel_hi:[1,0]")
    pk("mul", v, U, U)
    for k in range(1, 5):
        a(f"v_pk_fma_f32 v[{v}:{v+1}], v[{U+2*k}:{U+2*k+1}], v[{U+2*k}:{U+2*k+1}], v[{v}:{v+1}]")
    a(f"v_add_f32 v{v}, v{v}, v{v+1}")
    wave_allreduce(a, "v_add_f32", v, v+1)
    w2 += hook(1)
    a(f"v_mul_f32 v{v}, {f32bits(1/640)}, v{v}")
    bfround(m); bfround(v)
    a(f"v_add_f32 v{v}, {f32bits(1e-5)}, v{v}")
    bfround(v)
    a(f"v_sqrt_f32 v{v}, v{v}")
    lgk(0)
    for k in range(npair):
        a(f"v_lshlrev_b32 v{U+2*k}, 16, v{own+k}"); a(f"v_and_b32 v{U+2*k+1}, 0xffff0000, v{own+k}")
    bfround(v)
    a(f"v_rcp_f32 v{v}, v{v}")
    hook(2)
    for k in range(npair):
        pk("add", U+2*k, U+2*k, m, "op_sel_hi:[1,0]")
    for k in range(npair):
        a(f"v_cvt_pk_bf16_f32 v{t}, v{U+2*k}, v{U+2*k+1}")
        a(f"v_lshlrev_b32 v{U+2*k}, 16, v{t}"); a(f"v_and_b32 v{U+2*k+1}, 0xffff0000, v{t}")
        pk("mul", U+2*k, U+2*k, v, "op_sel_hi:[1,0]")
        a(f"v_cvt_pk_bf16_f32 v{out+2*k}, v{U+2*k}, v{U+2*k}"); a(f"v_cvt_pk_bf16_f32 v{out+2*k+1}, v{U+2*k+1}, v{U+2*k+1}")
def x_loads(raw, own, srow):
    a(f"buffer_load_dwordx4 v[{raw}:{raw+3}], v9, s[8:11], 0 offen"); a(f"buffer_load_dword v{raw+4}, v9, s[8:11], 0 offen offset:16")
    a(f"buffer_load_dwordx4 v[{own}:{own+3}], v10, s[8:11], s{srow} offen"); a(f"buffer_load_dword v{own+4}, v10, s[8:11], s{srow} offen offset:16")

def red640_setup(vw, vr_, sdst, dst, sidx):
    a(f"s_mul_i32 s7, s{WV}, 2560"); a(f"v_add_u32 v{vw}, s7, v14")
    a(f"v_lshlrev_b32 v{vr_}, 4, v0")
    a(f"s_mul_i32 s7, s{sidx}, 2560"); a(f"s_add_u32 s{sdst}, s7, {dst}")
    a("v_cmp_gt_u32 vcc, 160, v0"); a("s_mov_b64 s[46:47], vcc")
def red640_finish(lds, vr_, sdst):
    end = newlab("RF")
    lgk(0)
    a("s_barrier")
    a("s_mov_b64 exec, s[46:47]")
    a(f"s_cbranch_execz {end}")
    for w in range(4):
        a(f"ds_read_b128 v[{64+4*w}:{67+4*w}], v{vr_} offset:{lds+2560*w}")
    lgk(0)
    sum4x4(64, 64)
    tag(range(64, 68))
    a(f"buffer_store_dwordx4 v[64:67], v{vr_}, s[24:27], s{sdst} offen sc1")
    a.label(end)
    a("s_mov_b64 exec, -1")

NAME = "recurrent_scan__compressed_kv_cla__geglu_ffn__decode_kernel"
CK = 0; QL = 131072; PL = QL + 16384; MX = PL + 4096; LS = MX + 256
LDS_BYTES = LS + 1024
XD = 20
R0 = PL
if OPT["stamps"] == 2: a(f"s_mov_b32 s{BUD}, {OPT['budget']}")
stamp(0)
a("s_cmp_ge_u32 s2, 256"); a("s_cbranch_scc1 L_END")
a(f"s_load_dwordx2 s[8:9], s[0:1], {KA['x']}"); a(f"s_load_dwordx2 s[12:13], s[0:1], {KA['wq']}"); a(f"s_load_dwordx2 s[24:25], s[0:1], {KA['ws']}")
a(f"s_load_dwordx2 s[16:17], s[0:1], {KA['wuk']}"); a(f"s_load_dwordx2 s[20:21], s[0:1], {KA['ckv']}")
CPF = int(bool(OPT["cpf"]))
if CPF:
    a("s_getpc_b64 s[44:45]")
    a.label("L_PC")
    a(f"s_sub_u32 s44, s44, L_PC-{NAME}"); a("s_subb_u32 s45, s45, 0")
    a(f"s_mov_b32 s46, L_CODE_END-{NAME}"); a("s_mov_b32 s47, 0x20000")
    a("v_lshrrev_b32 v9, 4, v0"); a("v_and_b32 v9, 12, v9"); a("v_and_or_b32 v9, v0, 3, v9"); a("v_lshlrev_b32 v9, 7, v9")
    a("s_bfe_u32 s6, s2, 0x30003"); a("s_lshl_b32 s6, s6, 11")
    a("s_mov_b64 exec, 0xf")
    a("buffer_load_dword v218, v9, s[44:47], s6 offen")
    a("s_mov_b64 exec, -1")
a(f"v_and_b32 v{L}, 63, v0"); a(f"v_lshrrev_b32 v{I}, 6, v0")
a(f"s_mov_b32 s10, {hex(SZ['x'])}"); a("s_mov_b32 s11, 0x20000")
a(f"v_readfirstlane_b32 s{WV}, v{I}")
a(f"v_and_b32 v{I}, 15, v{L}"); a(f"v_lshrrev_b32 v{G}, 4, v{L}")
a(f"v_mul_u32_u24 v9, 20, v{L}")
a("s_and_b32 s4, s2, 7"); a("s_lshl_b32 s4, s4, 2"); a("s_bfe_u32 s5, s2, 0x20005")
if OPT["hrot"]: a(f"s_add_u32 s5, s5, {OPT['hrot']}"); a("s_and_b32 s5, s5, 3")
a("s_add_u32 s4, s4, s5")
a("s_bfe_u32 s5, s2, 0x20003")
a("s_mul_i32 s6, s5, 160"); a(f"s_mul_i32 s7, s{WV}, 40"); a("s_add_u32 s51, s6, s7")
a(f"s_mov_b32 s14, {hex(SZ['wq'])}"); a("s_mov_b32 s15, 0x20000")
a("s_lshr_b32 s6, s2, 7"); a("s_mul_i32 s7, s6, 5"); a("s_add_u32 s7, s7, s51")
a("s_lshl_b32 s54, s7, 13"); a("s_lshl_b32 s53, s4, 8"); a("s_add_u32 s54, s54, s53")
a(f"v_mul_u32_u24 v11, {10*8192}, v{G}"); a(f"v_lshl_add_u32 v11, v{I}, 4, v11")
lgk(0)
a("buffer_load_dwordx4 v[212:215], v9, s[8:11], 0 offen"); a("buffer_load_dword v216, v9, s[8:11], 0 offen offset:16")
if OPT["xbar"]: a("s_barrier")
for s in range(5):
    a(f"buffer_load_dwordx4 v[{64+4*s}:{67+4*s}], v11, s[12:15], s54 offen {NT}")
    if s < 4: a("s_add_u32 s54, s54, 8192")
a(f"s_load_dword s{E}, s[24:25], {EP}")
a(f"s_mov_b32 s26, {hex(SZ['ws'])}"); a("s_mov_b32 s27, 0x20000")
a(f"s_mov_b32 s18, {hex(SZ['wuk'])}"); a("s_mov_b32 s19, 0x20000")
a("s_lshl_b32 s6, s6, 2"); a("s_add_u32 s6, s6, s5"); a("s_lshl_b32 s6, s6, 9"); a("s_lshl_b32 s7, s4, 12"); a("s_add_u32 s67, s6, s7")
a(f"s_add_u32 s54, s67, {QPA}"); a(f"s_add_u32 s55, s67, {QPB}")
WARM = OPT["warm"]
if WARM:
    a(f"s_lshl_b32 s7, s{WV}, 7"); a("s_add_u32 s6, s54, s7")
    a("s_mov_b64 exec, 1")
    a("buffer_load_dword v217, v9, s[24:27], s6 offen")
    a("s_mov_b64 exec, -1")
a(f"v_and_b32 v9, 2, v{G}"); a(f"v_xor_b32 v9, v9, v{I}"); a("v_lshlrev_b32 v9, 4, v9"); a(f"v_lshl_add_u32 v36, v{G}, 13, v9")
for k in range(1, 4):
    a(f"v_xor_b32 v{36+k}, {64*k}, v36")
a("s_lshl_b32 s6, s5, 7"); a(f"s_lshl_b32 s7, s{WV}, 5"); a("s_add_u32 s6, s6, s7"); a("s_lshl_b32 s6, s6, 13"); a("s_add_u32 s62, s6, s53")
a("s_cmp_ge_u32 s2, 128"); a("s_cselect_b32 s63, 15, 13"); a(f"s_lshl_b32 s63, s{WV}, s63")
a("s_cmp_ge_u32 s2, 128"); a("s_cselect_b32 s62, 0x7000000, s62"); a("s_cselect_b64 s[30:31], -1, 0")
def ukdma(k):
    a("s_mov_b32 m0, s63")
    a("s_add_u32 s63, s63, 1024")
    a(f"buffer_load_dwordx4 v{36+(k&3)}, s[16:19], s62 offen {NT} lds")
    if k < 7: a(f"s_add_u32 s62, s62, {4*8192}")
UKP = OPT["ukpre"]; UKN = 8 - OPT["ukaft"]
for k in range(UKP): ukdma(k)
a(f"s_mov_b32 s{BUD}, {OPT['budget']}")
a(f"s_mov_b32 s22, {hex(SZ['ckv'])}"); a("s_mov_b32 s23, 0x20000")
a("s_and_b32 s61, s2, 7"); a("s_bfe_u32 s6, s2, 0x30004"); a("s_lshl_b32 s6, s6, 3"); a("s_or_b32 s61, s61, s6")
a("s_bfe_u32 s58, s2, 0x10003")
for k in range(8):
    a(f"v_xor_b32 v{220+k}, {2*k}, v{L}"); a(f"v_lshlrev_b32 v{220+k}, 4, v{220+k}")
a("s_lshl_b32 s56, s61, 17"); a(f"s_lshl_b32 s57, s{WV}, 15"); a("s_add_u32 s56, s56, s57")
a("s_lshl_b32 s60, s58, 14"); a("s_add_u32 s56, s56, s60"); a("s_lshl_b32 s60, s60, 1")
a("s_cmp_ge_u32 s2, 128"); a("s_cselect_b32 s56, s56, 0x7000000"); a("s_cselect_b32 s57, s57, 0x10000")
def ckdma(k):
    a("s_mov_b32 m0, s57")
    a("s_add_u32 s57, s57, 1024")
    if not OPT["nockv"]: a(f"buffer_load_dwordx4 v{220+(k&7)}, s[20:23], s56 offen {NTC} lds")
    a("s_add_u32 s56, s56, 1024")
    if k == 15: a("s_sub_u32 s56, s56, s53")
masks(9, 10)
a(f"v_and_b32 v9, 1, v{G}"); a("v_lshlrev_b32 v9, 4, v9"); a(f"v_lshl_add_u32 v14, v{I}, 5, v9")
a(f"s_lshl_b32 s7, s{WV}, 9"); a("v_add_u32 v15, s7, v14"); a(f"v_add_u32 v12, {R0}, v15")
a(f"v_lshlrev_b32 v204, 4, v{L}"); a(f"v_add_u32 v13, {R0}, v204")
a("s_lshl_b32 s6, s5, 2"); a(f"s_add_u32 s6, s6, s{WV}"); a("s_lshl_b32 s6, s6, 4"); a(f"v_lshl_add_u32 v10, v{G}, 2, s6")
nukl = [UKP]
def ukhook(k):
    n = 0
    while n < OPT["ukln"][k] and nukl[0] < UKN:
        ukdma(nukl[0]); nukl[0] += 1; n += 1
    return n
ln(212, 40, XD, 5 + UKP + WARM, 0, hook=ukhook)
stamp(2)
for s in range(5):
    a(f"v_cndmask_b32 v{52+s}, v{XD+s}, v{XD+5+s}, s[30:31]")
selA(40, 52)
nuk = nukl[0]; CP = 0
for s in range(5):
    if s < 4: selA(40 + 4*((s+1) & 1), 52 + s + 1)
    a(f"s_waitcnt vmcnt({4 - s + WARM + nuk + (0 if OPT['nockv'] else CP)})")
    mfma(48, vr(40 + 4*(s & 1), 4), vr(64+4*s, 4), "0" if s == 0 else None)
    for _ in range(2):
        if nuk < UKN and s < 4: ukdma(nuk); nuk += 1
    for _ in range(OPT["ckq"][s]):
        ckdma(CP); CP += 1
assert nuk == UKN
a(f"s_add_u32 s{E}, s{E}, {hex(GOLD)}")
a(f"s_lshl_b32 s59, s{E}, 2")
a(f"v_mov_b32 v211, s{E}")
a("s_nop 4")
a("ds_write_b128 v12, v[48:51]")
stamp(3)
lgk(0)
a("s_barrier")
def qp_pub():
    a("s_mov_b32 exec_hi, 0")
    for w in range(4):
        a(f"ds_read_b128 v[{64+4*w}:{67+4*w}], v13 offset:{512*w}")
    lgk(0)
    sum4x4(60, 64)
    tag(range(60, 64))
    a("buffer_store_dwordx4 v[60:63], v204, s[24:27], s54 offen")
    a("s_mov_b32 exec_hi, -1")
only_wave0(qp_pub)
a("s_cmp_ge_u32 s2, 128"); a("s_cbranch_scc1 L_Y")

UKL = 0
QB = 32768
QG = QB + 1024
AL = QG + 256
ML = AL + 256
R1 = ML + 64
R3 = R1 + 2048
RG = R3 + 10240
a(f"v_lshlrev_b32 v205, 3, v{L}")
a("s_lshl_b32 s6, s4, 12"); a(f"s_add_u32 s56, s6, {QPA}"); a(f"s_add_u32 s57, s6, {QPB}")
def iss(k):
    for p in range(8):
        a(f"buffer_load_dwordx2 v[{64+2*p}:{65+2*p}], v205, s[24:27], s{56+k} offen offset:{512*p} sc1")
UA = OPT["ukaft"]
if UA:
    iss(0)
    for k in range(UKN, 8): ukdma(k)
load_srd(a, 32, "wuv"); load_srd(a, 36, "wo"); load_srd(a, 20, "wg"); load_srd(a, 28, "wu")
a(f"v_and_b32 v9, 7, v{I}"); a("v_lshlrev_b32 v9, 1, v9"); a(f"v_xor_b32 v9, v9, v{G}"); a("v_lshlrev_b32 v9, 4, v9")
a(f"v_lshl_add_u32 v9, v{I}, 9, v9"); a(f"s_lshl_b32 s7, s{WV}, 13"); a("v_add_u32 v200, s7, v9")
for s in range(1, 4):
    a(f"v_xor_b32 v{200+s}, {64*s}, v200")
a(f"s_lshl_b32 s7, s{WV}, 8"); a(f"v_lshl_add_u32 v206, v{L}, 2, s7"); a(f"v_lshl_add_u32 v207, v{G}, 4, s7")
a(f"s_lshl_b32 s7, s{WV}, 6"); a(f"v_lshl_add_u32 v208, v{I}, 2, s7")
a(f"v_lshlrev_b32 v209, 2, v{L}"); a(f"v_lshlrev_b32 v210, 12, v{L}")
a("s_lshl_b32 s6, s4, 2"); a("s_add_u32 s58, s6, s5")
a("s_lshl_b32 s6, s58, 8"); a(f"s_add_u32 s60, s6, {QA}"); a("s_lshl_b32 s6, s58, 6"); a(f"s_add_u32 s61, s6, {QC}")
a("s_lshl_b32 s6, s4, 7"); a(f"s_add_u32 s64, s6, {FL2}"); a(f"s_add_u32 s65, s6, {FLS}")
def qp_B():
    def f():
        a("s_mov_b32 exec_hi, 0")
        a("buffer_store_dwordx4 v[60:63], v204, s[24:27], s55 offen sc1")
        a("s_mov_b32 exec_hi, -1")
    only_wave0(f)
def flag8(soff):
    a("s_mov_b64 exec, 0xff")
    a(f"buffer_store_dword v211, v210, s[24:27], s{soff} offen sc1")
    a("s_mov_b64 exec, -1")
def quad_flag(soff, every=False):
    l = newlab("QF")
    if every: a(f"s_cmp_lg_u32 s{WV}, 0")
    else: a(f"s_or_b32 s7, s{WV}, s5"); a("s_cmp_lg_u32 s7, 0")
    a(f"s_cbranch_scc1 {l}")
    flag8(soff)
    a.label(l)
def uk_frags():
    for T in range(2):
        for s in range(4):
            a(f"ds_read_b128 v[{128+16*T+4*s}:{131+16*T+4*s}], v{200+s} offset:{UKL+256*T}")
if UA:
    a(f"s_waitcnt vmcnt({UA})")
    tagcheck(list(range(64, 80)), 9)
    a("s_cbranch_vccz X_QOK")
else:
    a("s_waitcnt vmcnt(1)")
    a(f"s_cmp_eq_u32 s{WV}, 0"); a("s_cbranch_scc1 X_UKW"); a("s_waitcnt vmcnt(0)"); a.label("X_UKW")
    uk_frags()
stamp(4)
dual_poll(iss, lambda: tagcheck(list(range(64, 80)), 9), qp_B)
a.label("X_QOK")
stamp(5)
fstamp(7, 3)
if OPT["fl2pos"] == 0: quad_flag(64, OPT["fall"])
for k in (64, 68, 72, 76): pk("add", k, k, k+2)
pk("add", 64, 64, 68); pk("add", 72, 72, 76); pk("add", 64, 64, 72)
a("v_cvt_pk_bf16_f32 v64, v64, v65")
a(f"ds_write_b32 v206, v64 offset:{QB}")
if UA:
    a("s_waitcnt vmcnt(1)")
    if OPT["fl2pos"] != 0: a("s_waitcnt vmcnt(0)")
    else:
        a(f"s_or_b32 s7, s{WV}, s5"); a("s_cbranch_scc0 X_UKW"); a("s_waitcnt vmcnt(0)"); a.label("X_UKW")
    uk_frags()
lgk(0)
for s in range(4):
    a(f"ds_read_b128 v[{64+4*s}:{67+4*s}], v207 offset:{QB+64*s}")
fstamp(8, 3)
if OPT["fl2pos"] == 1: quad_flag(64, OPT["fall"])
for s in range(4):
    lgk(3-s)
    for T in range(2):
        mfma(48 + 4*T, vr(64+4*s, 4), vr(128+16*T+4*s, 4), "0" if s == 0 else None)
fstamp(9, 3)
a("s_nop 7")
a("v_cvt_pk_bf16_f32 v56, v48, v52")
a(f"ds_write_b32 v208, v56 offset:{QG}")
if OPT["fl2pos"] == 2: quad_flag(64, OPT["fall"])
fstamp(10, 3)
lgk(0)
a("s_barrier")
fstamp(11, 3)
def qa_pub():
    a("s_mov_b64 exec, 0xffff")
    a(f"ds_read_b128 v[64:67], v204 offset:{QG}")
    lgk(0)
    a("buffer_store_dwordx4 v[64:67], v204, s[24:27], s60 offen sc1")
    a(f"v_add3_u32 v68, v64, v65, s{E}"); a("v_add3_u32 v68, v66, v67, v68")
    a("buffer_store_dword v68, v209, s[24:27], s61 offen sc1")
    a("s_mov_b64 exec, -1")
only_wave0(qa_pub)
fstamp(12, 3)
if OPT["fl2pos"] == 3: quad_flag(64, OPT["fall"])
stamp(6)
qp_B()
a(f"v_lshlrev_b32 v9, 13, v{G}"); a(f"v_lshl_add_u32 v17, v{I}, 4, v9")
a("s_lshl_b32 s6, s5, 7"); a(f"s_lshl_b32 s7, s{WV}, 2"); a("s_add_u32 s6, s6, s7"); a("s_lshl_b32 s6, s6, 13"); a("s_add_u32 s61, s6, s53")
a(f"v_lshrrev_b32 v9, 1, v{G}"); a(f"v_and_b32 v10, 1, v{G}"); a("v_lshlrev_b32 v9, 2, v9"); a("v_add_u32 v9, v9, v10")
a("v_mul_u32_u24 v9, 2560, v9"); a(f"v_lshl_add_u32 v18, v{I}, 4, v9")
a("s_lshl_b32 s6, s4, 7"); a("s_and_b32 s7, s5, 1"); a("s_lshl_b32 s7, s7, 6"); a("s_add_u32 s6, s6, s7")
a("s_lshr_b32 s7, s5, 1"); a("s_lshl_b32 s7, s7, 2"); a("s_add_u32 s6, s6, s7"); a(f"s_lshl_b32 s7, s{WV}, 4"); a("s_add_u32 s6, s6, s7")
a("s_mul_i32 s57, s6, 1280")
def LGATE():
    if OPT["lg2"]:
        l0, l1 = newlab("LG"), newlab("LH")
        a(f"s_cmp_lg_u32 s{WV}, 1"); a(f"s_cbranch_scc1 {l1}")
        a("s_lshl_b32 s7, s2, 7"); a("s_add_u32 s63, s7, 0x02C000"); a(f"s_mov_b32 s50, {OPT['lg2']}")
        a("s_mov_b64 exec, 1")
        a.label(l0)
        a("buffer_load_dword v10, v204, s[24:27], s63 offen sc1")
        a("s_sub_u32 s50, s50, 1"); a("s_cselect_b32 s6, 0, -1")
        a("s_waitcnt vmcnt(0)")
        a(f"v_cmp_ne_u32 vcc, s{E}, v10")
        a("s_and_b32 vcc_lo, vcc_lo, s6")
        a(f"s_cbranch_vccnz {l0}")
        a("s_mov_b64 exec, -1")
        a.label(l1)
        a("s_barrier")
    if OPT["lgate"]:
        a("s_and_b32 s7, s2, 7"); a("s_lshl_b32 s7, s7, 12"); a(f"s_add_u32 s63, s7, {FL2}")
        a(f"v_lshlrev_b32 v9, 7, v{L}")
        a("s_mov_b32 exec_hi, 0")
        hint_poll(9, 63, 10)
        a("s_mov_b32 exec_hi, -1")
PF = OPT["pf"]
if PF and not OPT["nockv"]:
    a("s_load_dwordx2 s[12:13], s[0:1], 8"); a(f"s_mov_b32 s14, {hex(SZ['ckv'])}")
    a("s_and_b32 s6, s2, 7"); a("s_lshr_b32 s7, s2, 4"); a("s_lshl_b32 s7, s7, 3"); a("s_or_b32 s6, s6, s7"); a("s_lshl_b32 s6, s6, 17")
    a(f"s_lshl_b32 s7, s{WV}, 15"); a("s_add_u32 s6, s6, s7"); a("s_bfe_u32 s7, s2, 0x10003"); a("s_lshl_b32 s7, s7, 14"); a("s_add_u32 s6, s6, s7")
    a(f"s_add_u32 s6, s6, {(16-PF)*1024}")
    lgk(0)
    for k in range(PF):
        a(f"buffer_load_dwordx4 v[{64+4*k}:{67+4*k}], v204, s[12:15], s6 offen offset:{1024*(k&3)}")
        if k == 3: a("s_add_u32 s6, s6, 4096")
a(f"v_lshrrev_b32 v12, 3, v{I}"); a(f"v_and_b32 v13, 7, v{I}")
a(f"v_lshl_add_u32 v9, v{G}, 1, v12"); a(f"v_mul_u32_u24 v9, {5*3456}, v9"); a("v_lshl_add_u32 v16, v13, 4, v9")
a("s_mul_i32 s6, s51, 3456"); a("s_lshl_b32 s7, s4, 7"); a("s_add_u32 s60, s6, s7")
a("s_lshl_b32 s6, s4, 11"); a("s_lshl_b32 s7, s5, 9"); a("s_add_u32 s7, s7, s6")
a(f"s_add_u32 s54, s7, {GPA}"); a(f"s_add_u32 s55, s7, {GPB}")
a("v_cmp_eq_u32 vcc, 1, v12")
a(f"v_lshrrev_b32 v9, 1, v{G}"); a(f"v_and_b32 v10, 1, v{G}")
for s in range(5):
    a(f"v_cndmask_b32 v{XD+s}, v{XD+s}, v{XD+5+s}, vcc")
a("v_cmp_eq_u32 vcc, v9, v12")
a("v_lshlrev_b32 v9, 5, v13"); a("v_lshl_add_u32 v9, v10, 4, v9"); a("v_lshl_add_u32 v9, v12, 9, v9")
a(f"s_lshl_b32 s7, s{WV}, 10"); a("v_add_u32 v9, s7, v9")
a("v_add_u32 v11, 4096, v204")
a("v_cndmask_b32 v19, v11, v9, vcc")
if OPT["hwarm"]:
    a(f"v_lshlrev_b32 v9, 9, v{I}")
    a("s_lshr_b32 s6, s4, 4"); a("s_lshl_b32 s6, s6, 15"); a("s_and_b32 s7, s4, 15"); a("s_lshl_b32 s7, s7, 5"); a("s_add_u32 s6, s6, s7")
    a(f"s_lshl_b32 s7, s{WV}, 13"); a("s_add_u32 s6, s6, s7"); a(f"s_add_u32 s6, s6, {REC}")
    a("s_mov_b64 exec, 0xffff")
    a("buffer_load_dword v32, v9, s[24:27], s6 offen sc1")
    a("s_mov_b64 exec, -1")
uv = [[f"buffer_load_dwordx4 v[{128+4*s}:{131+4*s}], v17, s[32:35], s61 offen {NT}"] + ([f"s_add_u32 s61, s61, {16*8192}"] if s < 7 else []) for s in range(8)]
wo = []
for k in range(10):
    s, cb = divmod(k, 5); r = 160 + 20*s + 4*cb
    wo.append([f"buffer_load_dwordx4 v[{r}:{r+3}], v18, s[36:39], s57 offen offset:{1280*s+256*cb} {NT}"])
gul = []
for s in range(5):
    gul.append([f"buffer_load_dwordx4 v[{64+8*s}:{67+8*s}], v16, s[20:23], s60 offen {NT}"])
    gul.append([f"buffer_load_dwordx4 v[{68+8*s}:{71+8*s}], v16, s[28:31], s60 offen {NT}"] + (["s_add_u32 s60, s60, 3456"] if s < 4 else []))
WA = 0 if OPT["nolate"] else OPT["woaft"]
after = wo[10-WA:]; wo = wo[:10-WA]
def gu_step(s):
    selA(40 + 4*(s & 1), XD + s)
    a("s_nop 1")
    mfma(48, vr(40 + 4*(s & 1), 4), vr(64+8*s, 4), "0" if s == 0 else None)
    mfma(52, vr(40 + 4*(s & 1), 4), vr(68+8*s, 4), "0" if s == 0 else None)
def gu_finish():
    a("s_nop 7")
    a(f"ds_write_b128 v19, v[48:51] offset:{RG}"); a(f"ds_write_b128 v19, v[52:55] offset:{RG+256}")
    stamp(7)
    lgk(0)
    a("s_barrier")
    def gp_pub():
        a("s_mov_b32 exec_hi, 0")
        for p in range(8):
            a(f"ds_read_b128 v[{64+4*p}:{67+4*p}], v204 offset:{RG+512*p}")
        lgk(0)
        sum4x4(64, 64); sum4x4(80, 80)
        pk("add", 64, 64, 80); pk("add", 66, 66, 82)
        tag(range(64, 68))
        a("buffer_store_dwordx4 v[64:67], v204, s[24:27], s54 offen")
        a("buffer_store_dwordx4 v[64:67], v204, s[24:27], s55 offen sc1")
        a("s_mov_b32 exec_hi, -1")
    only_wave0(gp_pub)
def late(ffn):
    W = OPT["lw"] or 11
    loads = (gul if ffn else []) + uv + wo
    done = 0
    for k, ld in enumerate(loads):
        if k == OPT["pregate"]:
            LGATE(); stamp(14)
        for x in ld: a(x)
        if k >= W - 1 and k < len(loads) - 1:
            if OPT["lw"] or (ffn and done < 5): a(f"s_waitcnt vmcnt({W-1})")
            while ffn and done < 5 and 2*done + 1 <= k - W + 1:
                gu_step(done); done += 1
                if done == 5: gu_finish()
    if ffn and done < 5:
        for s in range(done, 5):
            a(f"s_waitcnt vmcnt({len(loads) - 2*s - 2})")
            gu_step(s)
        gu_finish()
if not OPT["nolate"]:
    a("s_cmp_ge_u32 s4, 27"); a("s_cbranch_scc1 X_NOG")
    late(True)
    a("s_branch X_LD")
    a.label("X_NOG")
    late(False)
    a.label("X_LD")
a(f"v_lshlrev_b32 v9, 9, v{I}")
a("s_lshr_b32 s6, s4, 4"); a("s_lshl_b32 s6, s6, 15"); a("s_and_b32 s7, s4, 15"); a("s_lshl_b32 s7, s7, 5"); a("s_add_u32 s6, s6, s7")
a(f"s_lshl_b32 s7, s{WV}, 13"); a("s_add_u32 s6, s6, s7"); a(f"s_add_u32 s54, s6, {REC}")
a(f"v_lshlrev_b32 v10, 10, v{G}"); a(f"v_lshl_add_u32 v10, v{I}, 4, v10")
a(f"v_lshlrev_b32 v11, 8, v{G}"); a(f"v_lshl_add_u32 v11, v{I}, 2, v11")
a("s_lshl_b32 s6, s58, 2"); a(f"s_add_u32 s6, s6, s{WV}"); a("s_lshl_b32 s7, s6, 12"); a(f"s_add_u32 s55, s7, {OP}")
a("s_lshl_b32 s7, s6, 10"); a(f"s_add_u32 s56, s7, {OC}")
a(f"s_lshl_b32 s7, s{WV}, 6"); a(f"v_lshl_add_u32 v12, v{I}, 2, s7"); a(f"v_lshl_add_u32 v13, v{G}, 4, s7")
a(f"s_lshl_b32 s7, s{WV}, 2"); a("v_mov_b32 v16, s7"); a("v_mov_b32 v19, 0")
a(f"s_lshl_b32 s7, s{WV}, 7"); a(f"v_lshl_add_u32 v20, v{G}, 5, s7")
a("s_lshl_b32 s6, s4, 13"); a("s_lshl_b32 s7, s5, 2"); a(f"s_add_u32 s7, s7, s{WV}"); a("s_lshl_b32 s7, s7, 9"); a("s_add_u32 s7, s7, s6")
a(f"s_add_u32 s60, s7, {CXA}"); a(f"s_add_u32 s61, s7, {CXB}")
a("s_lshl_b32 s7, s5, 7"); a("s_add_u32 s6, s6, s7"); a(f"s_lshl_b32 s7, s{WV}, 5"); a("s_add_u32 s6, s6, s7")
a(f"s_add_u32 s62, s6, {CXA}"); a(f"s_add_u32 s63, s6, {CXB}")
a(f"v_lshlrev_b32 v21, 9, v{I}"); a(f"v_lshl_add_u32 v21, v{G}, 3, v21")
red640_setup(22, 23, 66, SP, 58)
if OPT["warm"]: a("buffer_load_dwordx2 v[64:65], v21, s[24:27], s62 offen")
stamp(8)
if OPT["stamps"] == 1:
    a("s_waitcnt vmcnt(0)"); stamp(15)
a("s_mov_b64 exec, 0xffff")
a.label("X_RP")
a("buffer_load_dwordx4 v[32:35], v9, s[24:27], s54 offen sc1")
spend("X_RD")
a("s_waitcnt vmcnt(0)")
a(f"v_cmp_ne_u32 vcc, s{E}, v34")
a("s_cbranch_vccnz X_RP")
a.label("X_RD")
fstamp(0, 2)
a("s_mov_b64 exec, -1")
stamp(9)
def iss3():
    for s in range(4):
        a(f"buffer_load_dwordx4 v[{64+4*s}:{67+4*s}], v10, s[24:27], s55 offen offset:{256*s} sc1")
    for s in range(4):
        a(f"buffer_load_dword v{80+s}, v11, s[24:27], s56 offen offset:{64*s} sc1")
iss3()
a("s_mov_b64 exec, 0xffff")
a("v_mov_b32 v36, v32")
for ror in (8, 4, 2, 1):
    a("s_nop 1"); a(f"v_max_f32_dpp v36, v36, v36 row_ror:{ror} row_mask:0xf bank_mask:0xf")
a("v_sub_f32 v32, v32, v36")
a("v_exp_f32 v32, v32")
a(f"ds_write_b32 v16, v36 offset:{ML}")
a("v_mul_f32 v37, v32, v33")
a("v_cvt_pk_bf16_f32 v32, v32, v32")
a(f"ds_write_b32 v12, v32 offset:{AL}")
for ror in (8, 4, 2, 1):
    a("s_nop 1"); a(f"v_add_f32_dpp v37, v37, v37 row_ror:{ror} row_mask:0xf bank_mask:0xf")
a(f"ds_write_b32 v16, v37 offset:{ML+16}")
a("s_mov_b64 exec, -1")
lgk(0)
a(f"ds_read_b128 v[32:35], v13 offset:{AL}")
a("s_barrier")
a(f"ds_read_b128 v[40:43], v19 offset:{ML}"); a(f"ds_read_b128 v[44:47], v19 offset:{ML+16}")
for ld in after:
    for x in ld: a(x)
lgk(2)
for s in range(4):
    selA(96 + 4*s, 32 + s)
lgk(0)
a("v_max3_f32 v36, v40, v41, v42"); a("v_max_f32 v36, v36, v43")
for w in range(4): a(f"v_sub_f32 v{40+w}, v{40+w}, v36")
for w in range(4): a(f"v_exp_f32 v{40+w}, v{40+w}")
a("s_nop 0")
pk("mul", 44, 44, 40); pk("mul", 46, 46, 42); pk("add", 44, 44, 46); a("v_add_f32 v36, v44, v45")
a("v_rcp_f32 v36, v36")
a("s_nop 0")
pk("mul", 24, 40, 36, "op_sel_hi:[1,0]"); pk("mul", 26, 42, 36, "op_sel_hi:[1,0]")
fstamp(1, 2)
a(f"s_waitcnt vmcnt({WA})")
a.label("X_OP")
fstamp(2, 2)
for s in range(4):
    mfma(48, vr(96+4*s, 4), vr(64+4*s, 4), "0" if s == 0 else None)
cwcheck(64, 80, 38, 39)
a("s_cbranch_vccz X_OD")
spend("X_OD")
iss3()
a("s_waitcnt vmcnt(0)")
a("s_branch X_OP")
a.label("X_OD")
a(f"ds_write_b128 v15, v[48:51] offset:{R1}")
stamp(10)
fstamp(3, 2)
lgk(0)
a("s_barrier")
fstamp(4, 2)
for p in range(4):
    a(f"ds_read_b128 v[{64+8*p}:{67+8*p}], v20 offset:{R1+512*p}"); a(f"ds_read_b128 v[{68+8*p}:{71+8*p}], v20 offset:{R1+512*p+16}")
for p in range(4):
    lgk(6 - 2*p)
    f = 24 + (p & 2); sel = "op_sel_hi:[1,0" if p % 2 == 0 else "op_sel:[0,1"
    for k in range(0, 8, 2):
        if p == 0: a(f"v_pk_mul_f32 v[{64+k}:{65+k}], v[{64+k}:{65+k}], v[{f}:{f+1}] op_sel_hi:[1,0]")
        else: a(f"v_pk_fma_f32 v[{64+k}:{65+k}], v[{64+8*p+k}:{65+8*p+k}], v[{f}:{f+1}], v[{64+k}:{65+k}] " + (f"op_sel_hi:[1,0,1]" if p % 2 == 0 else "op_sel:[0,1,0]"))
fstamp(5, 2)
a("v_cvt_pk_bf16_f32 v64, v64, v64")
selA(40, 64)
for s in range(8):
    if s < 7:
        a(f"v_cvt_pk_bf16_f32 v{65+s}, v{65+s}, v{65+s}")
        selA(40 + 4*((s+1) & 1), 65 + s)
    else:
        a("s_nop 0")
    mfma(48, vr(40 + 4*(s & 1), 4), vr(128+4*s, 4), "0" if s == 0 else None)
fstamp(6, 2)
a("s_nop 6")
a("s_mov_b32 exec_hi, 0")
for r in range(4):
    a(f"v_bfi_b32 v{60+r}, v{VFF}, s{E}, v{48+r}")
a("buffer_store_dwordx4 v[60:63], v204, s[24:27], s60 offen")
a("s_mov_b32 exec_hi, -1")
stamp(11)
fstamp(7, 2)
def cx_B():
    a("s_mov_b32 exec_hi, 0")
    a("buffer_store_dwordx4 v[60:63], v204, s[24:27], s61 offen sc1")
    a("s_mov_b32 exec_hi, -1")
dual_poll(lambda k: a(f"buffer_load_dwordx2 v[64:65], v21, s[24:27], s{62+k} offen sc1"), lambda: tagcheck([64, 65], 9), cx_B)
stamp(12)
fstamp(8, 2)
if OPT["flspos"] == 0: quad_flag(65)
for ror in (8, 4, 2, 1):
    a(f"v_add_f32_dpp v64, v64, v64 row_ror:{ror} row_mask:0xf bank_mask:0xf")
    a(f"v_add_f32_dpp v65, v65, v65 row_ror:{ror} row_mask:0xf bank_mask:0xf")
    if ror > 1: a("s_nop 0")
a("v_cvt_pk_bf16_f32 v64, v64, v64"); a("v_cvt_pk_bf16_f32 v65, v65, v65")
selA(40, 64); selA(44, 65)
fstamp(9, 2)
a("s_nop 0")
for cb in range(5):
    for s in range(2):
        mfma(96 + 4*cb, vr(40+4*s, 4), vr(160+20*s+4*cb, 4), "0" if s == 0 else None)
fstamp(10, 2)
if OPT["flspos"] == 1: quad_flag(65)
a("s_nop 1")
for cb in range(5):
    if cb >= 3: a("s_nop 1")
    a(f"ds_write_b128 v22, v[{96+4*cb}:{99+4*cb}] offset:{R3+512*cb}")
fstamp(11, 2)
if OPT["flspos"] == 2: quad_flag(65)
red640_finish(R3, 23, 66)
fstamp(12, 2)
if OPT["flspos"] == 3: quad_flag(65)
stamp(13)
cx_B()
dump_stamps(16)
a("s_endpgm")

a.label("L_Y")
YR = 8192; FR = 20480
qp_B()
a("s_mov_b32 s53, s60"); a("s_mov_b32 s62, s58")
a("s_sub_u32 s60, s2, 128")
a("v_mov_b32 v18, v204")
stamp(14)
load_srd(a, 12, "wd"); load_srd(a, 16, "out")
if OPT["hwarm"]:
    a(f"v_lshlrev_b32 v19, 7, v{L}")
    a("s_lshl_b32 s6, s62, 2"); a(f"s_add_u32 s6, s6, s{WV}"); a("s_lshl_b32 s7, s6, 9"); a("s_and_b32 s6, s60, 7"); a("s_lshl_b32 s6, s6, 12"); a("s_add_u32 s7, s7, s6"); a(f"s_add_u32 s7, s7, {FL2}")
    a("s_mov_b64 exec, 0xf")
    a("buffer_load_dword v40, v19, s[24:27], s7 offen sc1")
    a("s_mov_b64 exec, 0xff")
    a(f"s_lshl_b32 s7, s{WV}, 10"); a("s_add_u32 s6, s6, s7"); a(f"s_add_u32 s6, s6, {FLS}")
    a("buffer_load_dword v40, v19, s[24:27], s6 offen sc1")
    a("s_lshr_b32 s6, s60, 3"); a("s_lshl_b32 s6, s6, 10"); a(f"s_add_u32 s6, s6, {FLY}")
    a("buffer_load_dword v40, v19, s[24:27], s6 offen sc1")
    a("s_mov_b64 exec, -1")
win = OPT["ywin"]
assert CP <= 15
LG = 0x02C000
for k in range(CP, 32):
    ckdma(k)
    if OPT["lg2"] and k == OPT["sigk"]:
        def sig():
            a("s_lshl_b32 s7, s60, 7"); a(f"s_add_u32 s7, s7, {LG}")
            a("s_mov_b64 exec, 1")
            a("buffer_store_dword v211, v18, s[24:27], s7 offen")
            a("s_mov_b64 exec, -1")
        only_wave0(sig)
    W = next((w for until, w in win if k < until), 0)
    if W and k < 31: a(f"s_waitcnt vmcnt({W-1})")
stamp(2)
a(f"v_and_b32 v9, 7, v{I}"); a("v_lshlrev_b32 v9, 1, v9"); a(f"v_xor_b32 v9, v9, v{G}"); a("v_lshlrev_b32 v9, 4, v9"); a(f"v_lshl_add_u32 v9, v{I}, 10, v9")
a(f"s_lshl_b32 s7, s{WV}, 15"); a("v_add_u32 v20, s7, v9"); a(f"v_add_u32 v24, {QL}, v9")
for s in range(1, 4):
    a(f"v_xor_b32 v{20+s}, {64*s}, v20"); a(f"v_xor_b32 v{24+s}, {64*s}, v24")
a(f"v_bfe_u32 v9, v{L}, 2, 2"); a(f"v_lshl_add_u32 v9, v{G}, 2, v9"); a("v_and_b32 v10, 7, v9"); a("v_lshlrev_b32 v10, 5, v10")
a("v_lshl_add_u32 v10, v9, 10, v10"); a(f"v_and_b32 v9, 3, v{L}"); a("v_lshl_add_u32 v10, v9, 3, v10")
a(f"s_lshl_b32 s7, s{WV}, 8"); a("v_add_u32 v28, s7, v10")
for T in range(1, 8):
    a(f"v_xor_b32 v{28+T}, {32*T}, v28")
a(f"s_and_b32 s7, s{WV}, 1"); a("s_lshl_b32 s7, s7, 3"); a(f"v_xor_b32 v9, s7, v{L}"); a("v_lshlrev_b32 v9, 4, v9")
a(f"s_lshl_b32 s7, s{WV}, 12"); a(f"s_add_u32 s7, s7, {QL}"); a("v_add_u32 v36, s7, v9")
for r in range(1, 4):
    a(f"v_xor_b32 v{36+r}, {32*r}, v36")
a(f"v_lshlrev_b32 v17, 2, v{L}"); a(f"v_lshlrev_b32 v19, 7, v{L}")
a("s_lshl_b32 s6, s62, 2"); a(f"s_add_u32 s6, s6, s{WV}")
a("s_lshl_b32 s7, s6, 12"); a(f"s_add_u32 s54, s7, {QA}"); a("s_lshl_b32 s7, s6, 10"); a(f"s_add_u32 s55, s7, {QC}")
a("s_lshl_b32 s7, s6, 9"); a("s_and_b32 s6, s60, 7"); a("s_lshl_b32 s6, s6, 12"); a("s_add_u32 s7, s7, s6"); a(f"s_add_u32 s56, s7, {FL2}")
a(f"v_lshlrev_b32 v9, 4, v{I}"); a(f"v_add_u32 v10, {MX}, v9"); a(f"s_lshl_b32 s7, s{WV}, 2"); a("v_add_u32 v11, s7, v10")
a(f"v_lshlrev_b32 v9, 6, v{I}"); a(f"v_add_u32 v15, {LS}, v9"); a(f"s_lshl_b32 s7, s{WV}, 4"); a(f"v_lshl_add_u32 v16, v{G}, 2, s7"); a("v_add_u32 v16, v16, v15")
a(f"v_add_u32 v12, {PL}, v18"); a(f"s_lshl_b32 s7, s{WV}, 10"); a("v_add_u32 v13, s7, v12")
a(f"v_lshlrev_b32 v61, 18, v{G}"); a(f"v_lshl_add_u32 v61, v{I}, 4, v61"); a(f"v_lshlrev_b32 v62, 16, v{G}"); a(f"v_lshl_add_u32 v62, v{I}, 2, v62")
a("s_lshl_b32 s6, s62, 6"); a(f"s_add_u32 s6, s6, s{WV}"); a("s_lshl_b32 s6, s6, 6"); a("s_add_u32 s6, s6, s61")
a("s_lshl_b32 s7, s6, 8"); a(f"s_add_u32 s36, s7, {OP}"); a("s_lshl_b32 s7, s6, 6"); a(f"s_add_u32 s64, s7, {OC}")
for r in range(1, 4):
    a(f"s_add_u32 s{36+r}, s36, {r << 16}"); a(f"s_add_u32 s{64+r}, s64, {r << 14}")
a("s_lshl_b32 s6, s62, 6"); a("s_add_u32 s6, s6, s61"); a("s_lshl_b32 s6, s6, 9"); a(f"s_add_u32 s57, s6, {REC}")
a(f"v_lshlrev_b32 v63, 5, v{I}"); a(f"v_lshl_add_u32 v63, v{G}, 4, v63")
a(f"s_mov_b32 s52, {f32bits(128 ** -0.5)}"); a("s_mov_b32 s53, s52"); a(f"s_mov_b32 s58, {f32bits(LOG2E)}")
a("s_lshl_b32 s6, s4, 6"); a("s_lshl_b32 s7, s5, 4"); a("s_add_u32 s6, s6, s7"); a(f"s_lshl_b32 s7, s{WV}, 2"); a("s_add_u32 s6, s6, s7"); a("s_mul_i32 s63, s6, 1280")
a(f"v_mul_u32_u24 v55, 1280, v{G}"); a(f"v_lshl_add_u32 v55, v{I}, 4, v55")
a(f"v_and_b32 v56, 7, v{I}"); a("v_lshlrev_b32 v56, 8, v56"); a(f"v_lshl_add_u32 v56, v{G}, 2, v56")
a("s_lshl_b32 s6, s4, 11"); a("s_lshl_b32 s7, s5, 6"); a("s_add_u32 s6, s6, s7"); a(f"s_lshl_b32 s7, s{WV}, 4"); a("s_add_u32 s6, s6, s7")
a(f"s_add_u32 s48, s6, {GPA}"); a(f"s_add_u32 s49, s6, {GPB}")
def qa_fetch():
    for r in range(4):
        a(f"buffer_load_dwordx4 v[{64+4*r}:{67+4*r}], v18, s[24:27], s54 offen offset:{1024*r} sc1")
    for r in range(4):
        a(f"buffer_load_dword v{80+r}, v17, s[24:27], s55 offen offset:{256*r} sc1")
QF = qa_fetch
def tr_all():
    for kg in range(4):
        if kg == 2:
            for t in range(8): a(f"v_add_u32 v{28+t}, 0x10000, v{28+t}")
        for T in range(8):
            for hf in range(2):
                off = (32*kg + 16*hf) * 1024 - (65536 if kg >= 2 else 0)
                r = 32*kg + 4*T + 2*hf
                a(f"ds_read_b64_tr_b16 a[{r}:{r+1}], v{28+T} offset:{off}")
def sa_reads(T):
    for s in range(16):
        a(f"ds_read_b128 v[{128+64*T+4*s}:{131+64*T+4*s}], v{20+(s&3)} offset:{16384*T+(s>>2)*256}")
if OPT["early"]:
    a("s_mov_b64 exec, 0xf")
    a("buffer_load_dword v40, v19, s[24:27], s56 offen sc1")
    a("s_mov_b64 exec, -1")
    a("s_waitcnt vmcnt(17)")
    sa_reads(0)
    a("s_mov_b64 exec, 0xf")
    a("s_waitcnt vmcnt(0)")
    stamp(3)
    a(f"v_cmp_ne_u32 vcc, s{E}, v40")
    a("s_cbranch_vccz Y_HINT")
    a("s_mov_b64 exec, -1")
    sa_reads(1)
    if OPT["pretr"]:
        a("s_barrier")
        tr_all()
    a("s_mov_b64 exec, 0xf")
    hint_poll(19, 56, 40)
    a("s_mov_b64 exec, -1")
    stamp(4)
    QF()
    a("s_branch Y_HD2" if OPT["pretr"] else "s_branch Y_HD")
    a.label("Y_HINT")
    a("s_mov_b64 exec, -1")
    stamp(4)
    QF()
    sa_reads(1)
    a.label("Y_HD")
    a("s_barrier")
else:
    a("s_waitcnt vmcnt(16)")
    sa_reads(0)
    a("s_waitcnt vmcnt(0)")
    sa_reads(1)
    stamp(3)
    lgk(0)
    a("s_barrier")
    a("s_mov_b64 exec, 0xf")
    hint_poll(19, 56, 40, OPT["fall"])
    a("s_mov_b64 exec, -1")
    stamp(4)
    QF()
def gu_ops():
    return [[f"buffer_load_dwordx4 a[{128+4*cb}:{131+4*cb}], v55, s[12:15], s63 offen offset:{256*cb} {NT}"] for cb in range(5)]
tr_all()
a.label("Y_HD2")
a("s_waitcnt vmcnt(0)")
a.label("Y_QP")
for r in range(4):
    a(f"ds_write_b128 v{36+r}, v[{64+4*r}:{67+4*r}] offset:{1024*r}")
cwcheck(64, 80, 9, 40)
a("s_cbranch_vccz Y_QD")
spend("Y_QD")
qa_fetch()
a("s_waitcnt vmcnt(0)")
a("s_branch Y_QP")
a.label("Y_QD")
stamp(5)
fstamp(0, 1)
lgk(0)
a("s_barrier")
fstamp(1, 1)
gu = [] if OPT["nolate"] else gu_ops()

def gu_emit(n):
    for _ in range(n):
        if gu:
            for x in gu.pop(0): a(x)
def score_ops(b):
    ops = []
    for rnd in range(2):
        for k in (0, 2): ops.append(f"v_cvt_pk_bf16_f32 v{48+k//2}, v{b+k}, v{b+k+1}")
        for k in (0, 2):
            ops.append(f"v_lshlrev_b32 v{b+k}, 16, v{48+k//2}"); ops.append(f"v_and_b32 v{b+k+1}, 0xffff0000, v{48+k//2}")
        if rnd == 0:
            for k in range(4): ops.append(f"v_mul_f32 v{b+k}, s52, v{b+k}")
    return ops
for s in range(8):
    a(f"ds_read_b128 v[{64+4*s}:{67+4*s}], v{24+(s&3)} offset:{(s>>2)*256}")
if OPT["gupos"] == 0: gu_emit(11)
for s in range(16):
    lgk(7 if s <= 8 else 15 - s)
    mfma(40, vr(128+4*s, 4), vr(64+4*s, 4), "0" if s == 0 else None)
    if s >= 8 and OPT["gupos"] == 1: gu_emit(1)
    if s in (8, 12) and OPT["gupos"] == 4: gu_emit(1)
    if s < 8: a(f"ds_read_b128 v[{64+4*(s+8)}:{67+4*(s+8)}], v{24+(s&3)} offset:{((s+8)>>2)*256}")
fstamp(2, 1)
t0ops = score_ops(40) + ["v_max3_f32 v50, v40, v41, v42", "v_max_f32 v50, v50, v43"]
for s in range(16):
    mfma(44, vr(192+4*s, 4), vr(64+4*s, 4), "0" if s == 0 else None)
    if s < 3:
        if OPT["gupos"] == 1 or (s == 0 and OPT["gupos"] == 4): gu_emit(1)
        a("s_nop 1")
    elif t0ops:
        a(t0ops.pop(0))
        if t0ops and s >= 8: a(t0ops.pop(0))
        if s in (4, 7) and OPT["gupos"] == 4: gu_emit(1)
    if s == 15 and OPT["gupos"] == 4: gu_emit(1)
assert not t0ops
fstamp(3, 1)
a("s_nop 7")
sc = score_ops(44)
sc[6:10] = ["v_pk_mul_f32 v[44:45], v[44:45], s[52:53]", "v_pk_mul_f32 v[46:47], v[46:47], s[52:53]"]
for op in sc: a(op)
a("v_max3_f32 v50, v50, v44, v45"); a("v_max3_f32 v50, v50, v46, v47")
cross_rows(a, "v_max_f32", 50, 51)
fstamp(4, 1)
a("v_mul_f32 v50, s58, v50")
a("v_ceil_f32 v50, v50")
for k in range(8):
    a(f"v_fma_f32 v{40+k}, v{40+k}, s58, -v50")
a(f"v_mul_f32 v50, {f32bits(128.0)}, v50")
for k in range(8):
    a(f"v_exp_f32 v{40+k}, v{40+k}")
a("ds_write_b32 v11, v50")
for k in range(4):
    a(f"v_cvt_pk_bf16_f32 v{48+k}, v{40+2*k}, v{41+2*k}")
a("ds_write_b128 v13, v[48:51]")
pk("add", 40, 40, 42); pk("add", 44, 44, 46); pk("add", 40, 40, 44); a("v_add_f32 v40, v40, v41")
a("ds_write_b32 v16, v40")
stamp(6)
fstamp(5, 1)
lgk(0)
fstamp(6, 1)
a("s_barrier")
fstamp(7, 1)
a("ds_read_b128 v[48:51], v10")
for kg in range(4):
    a(f"ds_read_b128 v[{64+4*kg}:{67+4*kg}], v12 offset:{1024*kg}")
for w in range(4):
    a(f"ds_read_b128 v[{80+4*w}:{83+4*w}], v15 offset:{16*w}")
a(f"s_mov_b32 s42, {f32bits(-1/128)}")
if OPT["gupos"] == 2: gu_emit(11)
lgk(8)
a("v_max3_f32 v52, v48, v49, v50"); a("v_max_f32 v52, v52, v51")
a("v_sub_f32 v40, v52, v48"); a("v_sub_f32 v41, v52, v49")
a("v_cvt_u32_f32 v44, v40"); a("v_cvt_u32_f32 v45, v41"); a("v_cvt_pk_u16_u32 v44, v44, v45")
def rescale(kg):
    sel = "op_sel_hi:[1,0]" if kg % 2 == 0 else "op_sel:[0,1]"
    return [f"v_pk_sub_u16 v{64+4*kg+k}, v{64+4*kg+k}, v{44+kg//2} {sel} clamp" for k in range(4)]
lgk(4)
for op in rescale(0): a(op)
a("v_sub_f32 v42, v52, v50"); a("v_sub_f32 v43, v52, v51")
fl = rescale(1) + ["v_cvt_u32_f32 v46, v42", "v_cvt_u32_f32 v47, v43", "v_cvt_pk_u16_u32 v45, v46, v47"] + rescale(2) + rescale(3)
fl += ["s_waitcnt lgkmcnt(0)"] + [f"v_mul_f32 v{40+w}, s42, v{40+w}" for w in range(4)] + [f"v_exp_f32 v{40+w}, v{40+w}" for w in range(4)]
for w in range(4): fl += [f"v_add_f32 v{80+4*w}, v{80+4*w}, v{81+4*w}", f"v_add_f32 v{82+4*w}, v{82+4*w}, v{83+4*w}"]
for w in range(4): fl += [f"v_add_f32 v{80+4*w}, v{80+4*w}, v{82+4*w}"]
fl += ["v_mul_f32 v53, v80, v40"] + [f"v_fmac_f32 v53, v{80+4*w}, v{40+w}" for w in range(1, 4)]
fl += ["v_mul_f32 v52, s42, v52", "v_sub_f32 v52, 0, v52", f"v_mov_b32 v54, s{E}"]
g = {}
for kg in range(3):
    for T in range(8):
        n = 1 if fl and fl[0].startswith("v_exp") else 2
        g[kg, T] = fl[:n]; fl = fl[n:]
g[3, 0] = fl
assert len(fl) <= 2, fl
cv = lambda k, r: f"v_cvt_pk_bf16_f32 v{128+4*r+k}, v{96+8*k+r}, v{100+8*k+r}"
g[3, 1] = ["s_nop 2"]; g[3, 2] = ["s_nop 2"]
g[3, 3] = [cv(0, 0), cv(0, 1), cv(0, 2)]; g[3, 4] = [cv(0, 3), "s_nop 1"]
g[3, 5] = [cv(1, 0), cv(1, 1), cv(1, 2)]; g[3, 6] = [cv(1, 3), "s_nop 1"]
g[3, 7] = [cv(2, r) for r in range(4)] + [f"v_add3_u32 v{144+r}, v{128+4*r}, v{129+4*r}, s{E}" for r in range(4)]
def rec_store():
    a("s_mov_b32 exec_hi, 0")
    a("buffer_store_dwordx4 v[52:55], v63, s[24:27], s57 offen sc1")
    a("s_mov_b32 exec_hi, -1")
nm = 0
assert OPT["reck"] >= 25
for kg in range(4):
    fstamp(8 + kg, 1)
    for T in range(8):
        mfma(96 + 4*T, vr(64+4*kg, 4), ar(32*kg + 4*T, 4), "0" if kg == 0 else None)
        nm += 1
        for op in g.get((kg, T), []): a(op)
        if OPT["gupos"] == 4 and nm in (2, 7, 12, 17, 22): gu_emit(1)
        if nm == OPT["reck"]: only_wave0(rec_store)
fstamp(12, 1)
for r in range(4):
    a(cv(3, r))
    a(f"buffer_store_dwordx4 v[{128+4*r}:{131+4*r}], v61, s[24:27], s{36+r} offen sc1")
    a(f"v_add3_u32 v{144+r}, v{130+4*r}, v{131+4*r}, v{144+r}")
    a(f"buffer_store_dword v{144+r}, v62, s[24:27], s{64+r} offen sc1")
if OPT["reck"] > 32: only_wave0(rec_store)
stamp(7)
fstamp(13, 1)
NAFT = len(gu)
gu_emit(11)
if OPT["nolate"]: a("s_branch Y_NOF")
a("s_cmp_ge_u32 s4, 27"); a("s_cbranch_scc1 Y_NOF")
a("s_lshl_b32 s58, s4, 2"); a("s_add_u32 s58, s58, s5")
red640_setup(22, 23, 66, YP, 58)
dual_poll(lambda k: a(f"buffer_load_dword v64, v56, s[24:27], s{48+k} offen sc1"), lambda: tagcheck([64], 9), lambda: None)
stamp(8)
def fly():
    a("s_lshl_b32 s7, s58, 7"); a(f"s_add_u32 s7, s7, {FLY}")
    a(f"v_mov_b32 v10, s{E}"); a("v_mov_b32 v9, 0")
    a("s_mov_b64 exec, 1")
    a("buffer_store_dword v10, v9, s[24:27], s7 offen sc1")
    a("s_mov_b64 exec, -1")
only_wave0(fly)
a("v_add_f32_dpp v64, v64, v64 row_ror:2 row_mask:0xf bank_mask:0xf")
a("s_nop 1")
a("v_add_f32_dpp v64, v64, v64 row_ror:4 row_mask:0xf bank_mask:0xf")
bfround(64)
a("s_nop 1")
a("v_mov_b32_dpp v65, v64 quad_perm:[1,1,3,3] row_mask:0xf bank_mask:0xf")
a("v_mov_b32_dpp v64, v64 quad_perm:[0,0,2,2] row_mask:0xf bank_mask:0xf")
k0 = math.sqrt(2/math.pi); k1 = 0.044715
a("v_mul_f32 v66, v64, v64"); a(f"v_mov_b32 v67, {f32bits(k1)}"); a("v_fma_f32 v66, v66, v67, 1.0"); a("v_mul_f32 v66, v66, v64")
a(f"v_mul_f32 v66, {f32bits(-2*k0*LOG2E)}, v66")
a("v_exp_f32 v66, v66"); a("s_nop 0"); a("v_add_f32 v66, 1.0, v66"); a("v_rcp_f32 v66, v66"); a("s_nop 0")
a("v_mul_f32 v64, v64, v66"); bfround(64)
a("v_mul_f32 v64, v64, v65"); a("v_cvt_pk_bf16_f32 v64, v64, v64")
selA(40, 64)
a("s_nop 1")
for cb in range(5):
    mfma(96 + 4*cb, vr(40, 4), ar(128+4*cb, 4), "0")
a("s_nop 7")
for cb in range(5):
    a(f"ds_write_b128 v22, v[{96+4*cb}:{99+4*cb}] offset:{YR+512*cb}")
red640_finish(YR, 23, 66)
a.label("Y_NOF")
stamp(9)
a("s_cmp_ge_u32 s60, 40"); a("s_cbranch_scc1 Y_FIN")
a("v_lshlrev_b32 v12, 1, v0"); a("s_lshl_b32 s58, s60, 5")
a("buffer_load_ushort v40, v12, s[8:11], s58 offen")
a("v_and_b32 v9, 3, v0"); a("v_lshrrev_b32 v10, 2, v0"); a("v_lshlrev_b32 v13, 4, v9")
a("v_mul_u32_u24 v14, 2560, v10"); a("v_add_u32 v14, v14, v13")
a("v_add_u32 v15, 64, v10")
a("v_min_u32 v16, 107, v15"); a("v_mul_u32_u24 v16, 2560, v16"); a("v_add_u32 v16, v16, v13")
a("v_cmp_gt_u32 s[44:45], 44, v10")
a(f"s_lshl_b32 s7, s{WV}, 4"); a(f"v_lshl_add_u32 v18, v{G}, 6, v{I}"); a("v_add_u32 v18, s7, v18")
a("v_min_u32 v18, 107, v18"); a("v_lshlrev_b32 v18, 7, v18")
a(f"v_lshrrev_b32 v17, 2, v{L}"); a("v_lshl_add_u32 v17, v17, 4, v9"); a("v_lshlrev_b32 v17, 7, v17")
a("s_and_b32 s6, s60, 7"); a("s_lshl_b32 s6, s6, 12"); a(f"s_lshl_b32 s7, s{WV}, 9"); a("s_add_u32 s6, s6, s7"); a(f"s_add_u32 s53, s6, {FLS}")
a("s_lshl_b32 s6, s60, 6"); a(f"s_add_u32 s54, s6, {YP}"); a(f"s_add_u32 s55, s6, {SP}"); a(f"s_add_u32 s56, s55, {64*2560}")
a(f"s_mov_b32 s52, {FLY}")
a(f"v_and_b32 v11, 1, v{G}"); a("v_lshlrev_b32 v11, 3, v11"); a(f"v_lshrrev_b32 v15, 1, v{G}"); a("v_lshl_add_u32 v11, v15, 2, v11"); a("v_add_u32 v13, v13, v11")
a(f"s_lshl_b32 s7, s{WV}, 6"); a("v_add_u32 v13, s7, v13")
a("v_lshlrev_b32 v11, 2, v0")
def red4(b):
    a(f"v_permlane32_swap_b32 v{b}, v{b+1}"); a(f"v_permlane32_swap_b32 v{b+2}, v{b+3}")
    a(f"v_add_f32 v{b}, v{b}, v{b+1}"); a(f"v_add_f32 v{b+2}, v{b+2}, v{b+3}")
    a("s_nop 1")
    a(f"v_permlane16_swap_b32 v{b}, v{b+2}")
    a(f"v_add_f32 v{b}, v{b}, v{b+2}")
    for ror in (8, 4):
        a("s_nop 1"); a(f"v_add_f32_dpp v{b}, v{b}, v{b} row_ror:{ror} row_mask:0xf bank_mask:0xf")
if OPT["nolate"]: a("s_branch Y_YG")
a("s_mov_b32 exec_hi, 0")
hint_poll(18, 52, 19)
a("s_mov_b32 exec_hi, -1")
a.label("Y_YF")
a("buffer_load_dwordx4 v[64:67], v14, s[24:27], s54 offen sc1")
a("buffer_load_dwordx4 v[68:71], v16, s[24:27], s54 offen sc1")
spend("Y_YG")
a("s_waitcnt vmcnt(0)")
tagcheck(list(range(64, 72)), 19)
a("s_cbranch_vccnz Y_YF")
a.label("Y_YG")
stamp(10)
for r in range(4):
    a(f"v_cndmask_b32 v{68+r}, 0, v{68+r}, s[44:45]")
pk("add", 24, 64, 68); pk("add", 26, 66, 70)
a("s_nop 1")
red4(24)
a(f"ds_write_b32 v13, v24 offset:{FR+256}")
lgk(0)
a("s_barrier")
def silu_part():
    for w in range(4):
        a(f"ds_read_b32 v{24+w}, v11 offset:{FR+256+64*w}")
    lgk(0)
    a("v_add_f32 v24, v24, v25"); a("v_add_f32 v26, v26, v27"); a("v_add_f32 v24, v24, v26")
    bfround(24)
    a(f"v_mul_f32 v25, {f32bits(-LOG2E)}, v24")
    a("v_exp_f32 v25, v25"); a("s_nop 0"); a("v_add_f32 v25, 1.0, v25"); a("v_rcp_f32 v25, v25"); a("s_nop 0")
    a("v_mul_f32 v28, v24, v25"); bfround(28)
    a("v_lshlrev_b32 v40, 16, v40")
only_wave0(silu_part)
a("s_mov_b64 exec, 0xff")
hint_poll(17, 53, 19)
a("s_mov_b64 exec, -1")
stamp(11)
a.label("Y_SF")
a("buffer_load_dwordx4 v[64:67], v14, s[24:27], s55 offen sc1")
a("buffer_load_dwordx4 v[68:71], v14, s[24:27], s56 offen sc1")
spend("Y_SG")
a("s_waitcnt vmcnt(0)")
pk("add", 20, 64, 68); pk("add", 22, 66, 70)
tagcheck(list(range(64, 72)), 19)
a("s_cbranch_vccnz Y_SF")
a.label("Y_SG")
red4(20)
a(f"ds_write_b32 v13, v20 offset:{FR}")
stamp(12)
lgk(0)
a("s_barrier")
a(f"s_cmp_lg_u32 s{WV}, 0"); a("s_cbranch_scc1 Y_FIN")
a("s_mov_b64 exec, 0xffff")
for w in range(4):
    a(f"ds_read_b32 v{20+w}, v11 offset:{FR+64*w}")
lgk(0)
a("v_add_f32 v20, v20, v21"); a("v_add_f32 v22, v22, v23"); a("v_add_f32 v20, v20, v22")
bfround(20)
a("v_mul_f32 v20, v20, v28"); bfround(20)
a("v_add_f32 v20, v20, v40")
a("v_cvt_pk_bf16_f32 v20, v20, v20")
a("buffer_store_short v20, v12, s[16:19], s58 offen")
a("s_cmp_lg_u32 s60, 0"); a("s_cbranch_scc1 Y_FIN")
a(f"v_mov_b32 v10, s{E}"); a("v_mov_b32 v9, 0")
a("s_mov_b64 exec, 1")
a(f"buffer_store_dword v10, v9, s[24:27], 0 offen offset:{EP} sc1")
a.label("Y_FIN")
stamp(13)
dump_stamps(16)
a.label("L_END")
a("s_endpgm")
a.label("L_CODE_END")

hdr = open("recurrent_scan__compressed_kv_cla__geglu_ffn__decode.s.ref").read().split("\n")
hdr = [l for l in hdr if l.startswith(";") and "@launch" not in l]
txt = "\n".join(hdr) + f"\n; @launch grid=(256,1,1) block=(256,1,1) lds={LDS_BYTES}\n"
txt += f'.amdgcn_target "amdgcn-amd-amdhsa--gfx950"\n.text\n.globl {NAME}\n.p2align 8\n.type {NAME},@function\n{NAME}:\n' + a.text()
txt += '.section .rodata,"a"\n.p2align 6\n' + kernel_desc(NAME, 408, 256, 102)
open(sys.argv[1], "w").write(txt)
```

```python
import sys, math, json
sys.path.insert(0, "work")
from asmlib import *

OPT = dict(stamps=0, fine=0, nt="", ntc="", pollA=12, budget=40000, ukpre=0, ukln=[2,3,3], xbar=0, cpf=1, lw=0,
           reck=25, fl2pos=2, flspos=1, fsall=0, lg2=0, sigk=24, ywin=[], nolate=0, nockv=0, uvtr=1, uvfirst=0, ydiag=0, swap=1, pollL=40, yreal=4, pf=0, gpk=20, wofirst=0, xpf=0, obar=0, wos=[0,10], wow=0, pregate=0, fpos=1, gue=2, ypos=0, gfail=0)
for kv in sys.argv[2:]:
    k, v = kv.split("=", 1)
    assert k in OPT, k
    OPT[k] = json.loads(v) if v[:1] in "[0123456789" else v
NT = OPT["nt"]; NTC = OPT["ntc"]

EP = 0x000000
FL2 = 0x001000
FLY = 0x011000
QA = 0x018000
QC = 0x020000
LG = 0x02C000
FLS = 0x030000
GPA, GPB = 0x050000, 0x060000
CXA, CXB = 0x070000, 0x0B0000
REC = 0x0F0000
YP = 0x100000
SP = 0x150000
QPA, QPB = 0x1A0000, 0x1C0000
OP = 0x200000
OC = 0x400000
DBG = 0x600000
GOLD = 0x9E3779B9
LOG2E = math.log2(math.e)

L, I, G = 1, 2, 3
MK = 4
VFF = 8
WV = 3
E = 40
BUD = 41
a = Asm()
def fstamp(k, role):
    if OPT["fine"] == role:
        a(f"s_memtime s[{68+2*k}:{69+2*k}]")
def stamp(k, diag=False):
    if OPT["ydiag"] and not diag and k not in (0, 14, 2, 3): return
    if OPT["stamps"] == 2: a(f"s_mov_b32 s{68+2*k}, s{BUD}")
    elif OPT["stamps"] == 3 and k not in (0, 13): pass
    elif OPT["stamps"] and not OPT["fine"]: a(f"s_memrealtime s[{68+2*k}:{69+2*k}]")
def dump_stamps(n=16):
    if not OPT["stamps"]: return
    a("s_mov_b64 exec, -1")
    a("s_waitcnt lgkmcnt(0)")
    for k in range(n):
        a(f"v_mov_b32 v{16+k}, s{68+2*k}")
    a("s_lshl_b32 s6, s2, 2"); a(f"s_add_u32 s6, s6, s{WV}"); a("s_lshl_b32 s6, s6, 6"); a(f"s_add_u32 s6, s6, {DBG}")
    a("v_mov_b32 v9, 0")
    a("s_mov_b64 exec, 1")
    for k in range(0, n, 4):
        a(f"buffer_store_dwordx4 v[{16+k}:{19+k}], v9, s[24:27], s6 offen offset:{4*k}")
def lgk(n): a(f"s_waitcnt lgkmcnt({n})")
def vmw(n): a(f"s_waitcnt vmcnt({n})")
def seq(*lines):
    for l in lines: a(l)

def masks(t0, t1):
    seq(f"v_and_b32 v{t0}, 1, v{I}", f"v_lshlrev_b32 v{t0}, 4, v{t0}", f"v_mov_b32 v{t1}, 0xffff",
        f"v_lshlrev_b32 v{t0}, v{t0}, v{t1}", f"v_bfe_u32 v{t1}, v{I}, 1, 2")
    for r in range(4):
        a(f"v_cmp_eq_u32 s[{42+2*r}:{43+2*r}], {r}, v{t1}")
    a(f"v_mov_b32 v{VFF}, 0xff")
    for r in range(4):
        a(f"v_cndmask_b32 v{MK+r}, 0, v{t0}, s[{42+2*r}:{43+2*r}]")
def selA(dst, dup):
    for r in range(4):
        a(f"v_and_b32 v{dst+r}, v{dup}, v{MK+r}")
def bfround(v):
    a(f"v_cvt_pk_bf16_f32 v{v}, v{v}, v{v}")
    a(f"v_and_b32 v{v}, 0xffff0000, v{v}")
def mfma(d, A, B, C=None):
    a(f"v_mfma_f32_16x16x32_bf16 v[{d}:{d+3}], {A}, {B}, " + (f"v[{d}:{d+3}]" if C is None else C))
def pk(op, d, x, y, mod=""):
    a(f"v_pk_{op}_f32 v[{d}:{d+1}], v[{x}:{x+1}], v[{y}:{y+1}] {mod}".rstrip())
def sum4x4(d, b):
    pk("add", b, b, b+4); pk("add", b+2, b+2, b+6); pk("add", b+8, b+8, b+12); pk("add", b+10, b+10, b+14)
    pk("add", d, b, b+8); pk("add", d+2, b+2, b+10)
def tag(regs):
    for r in regs:
        a(f"v_bfi_b32 v{r}, v{VFF}, s{E}, v{r}")
def tagcheck(regs, t):
    a(f"v_xor_b32 v{t}, s{E}, v{regs[0]}")
    for r in regs[1:]:
        a(f"v_bitop3_b32 v{t}, v{t}, v{r}, s{E} bitop3:0xf6")
    a(f"v_and_b32 v{t}, v{VFF}, v{t}")
    a(f"v_cmp_ne_u32 vcc, 0, v{t}")
def cwcheck(p, c, t0, t1):
    a(f"v_add3_u32 v{t0}, v{p}, v{p+1}, s59")
    a(f"v_add3_u32 v{t1}, v{c}, v{c+1}, v{c+2}")
    for k in range(p+2, p+16, 2):
        a(f"v_add3_u32 v{t0}, v{k}, v{k+1}, v{t0}")
    a(f"v_add_u32 v{t1}, v{t1}, v{c+3}")
    a(f"v_cmp_ne_u32 vcc, v{t0}, v{t1}")
def spend(giveup):
    seq(f"s_sub_u32 s{BUD}, s{BUD}, 1", f"s_cmp_lt_i32 s{BUD}, 0", f"s_cbranch_scc1 {giveup}")
lab = [0]
def newlab(p):
    lab[0] += 1
    return f"{p}_{lab[0]}"
def only_wave0(fn):
    l = newlab("W0")
    a(f"s_cmp_lg_u32 s{WV}, 0"); a(f"s_cbranch_scc1 {l}")
    fn()
    a.label(l)
def dual_poll(issue, check, storeB=lambda: None, n=None):
    top, done = newlab("PA"), newlab("PD")
    n = n or OPT["pollA"]
    a(f"s_mov_b32 s50, {n}")
    a.label(top)
    issue(0)
    spend(done)
    vmw(0)
    check()
    a(f"s_cbranch_vccz {done}")
    a("s_sub_u32 s50, s50, 1")
    a(f"s_cbranch_scc0 {top}")
    storeB()
    a(f"s_mov_b32 s50, {n}")
    issue(1)
    vmw(0)
    check()
    a(f"s_cbranch_vccnz {top}")
    a.label(done)
def hint_poll(vaddr, soff, t):
    top, done = newlab("FP"), newlab("FD")
    a.label(top)
    a(f"buffer_load_dword v{t}, v{vaddr}, s[24:27], s{soff} offen sc1")
    spend(done)
    vmw(0)
    a(f"v_cmp_ne_u32 vcc, s{E}, v{t}")
    a(f"s_cbranch_vccnz {top}")
    a.label(done)
def flag8(soff, vstride):
    seq("s_mov_b64 exec, 0xff", f"buffer_store_dword v211, v{vstride}, s[24:27], s{soff} offen sc1", "s_mov_b64 exec, -1")
def quad_flag(soff, vstride, every=False):
    l = newlab("QF")
    if every: a(f"s_cmp_lg_u32 s{WV}, 0")
    else: a(f"s_or_b32 s7, s{WV}, s5")
    a(f"s_cbranch_scc1 {l}")
    flag8(soff, vstride)
    a.label(l)
def red640_setup(vw, vr_, sdst, dst, sidx):
    seq(f"s_mul_i32 s7, s{WV}, 2560", f"v_add_u32 v{vw}, s7, v14", f"v_lshlrev_b32 v{vr_}, 4, v0",
        f"s_mul_i32 s7, s{sidx}, 2560", f"s_add_u32 s{sdst}, s7, {dst}", "v_cmp_gt_u32 vcc, 160, v0", "s_mov_b64 s[46:47], vcc")
def red640_finish(lds, vr_, sdst):
    end = newlab("RF")
    lgk(0)
    a("s_barrier")
    a("s_mov_b64 exec, s[46:47]")
    a(f"s_cbranch_execz {end}")
    for w in range(4):
        a(f"ds_read_b128 v[{64+4*w}:{67+4*w}], v{vr_} offset:{lds+2560*w}")
    lgk(0)
    sum4x4(64, 64)
    tag(range(64, 68))
    a(f"buffer_store_dwordx4 v[64:67], v{vr_}, s[24:27], s{sdst} offen sc1")
    a.label(end)
    a("s_mov_b64 exec, -1")

NAME = "recurrent_scan__compressed_kv_cla__geglu_ffn__decode_kernel"
CK = 0; QL = 131072; PL = QL + 16384; MX = PL + 4096; LS = MX + 256
LDS_BYTES = LS + 1024
XD = 20
R0 = PL
if OPT["stamps"] == 2: a(f"s_mov_b32 s{BUD}, {OPT['budget']}")
stamp(0)
a("s_cmp_ge_u32 s2, 256"); a("s_cbranch_scc1 L_END")
for r, n in ((8, "x"), (12, "wq"), (24, "ws"), (16, "wuk"), (20, "ckv")):
    a(f"s_load_dwordx2 s[{r}:{r+1}], s[0:1], {KA[n]}")
if OPT["cpf"]:
    a("s_getpc_b64 s[44:45]")
    a.label("L_PC")
    seq(f"s_sub_u32 s44, s44, L_PC-{NAME}", "s_subb_u32 s45, s45, 0", f"s_mov_b32 s46, L_CODE_END-{NAME}", "s_mov_b32 s47, 0x20000",
        "v_lshrrev_b32 v9, 4, v0", "v_and_b32 v9, 12, v9", "v_and_or_b32 v9, v0, 3, v9", "v_lshlrev_b32 v9, 7, v9",
        "s_bfe_u32 s6, s2, 0x30003", "s_lshl_b32 s6, s6, 11", "s_mov_b64 exec, 0xf",
        "buffer_load_dword v218, v9, s[44:47], s6 offen", "s_mov_b64 exec, -1")
seq(f"v_and_b32 v{L}, 63, v0", f"v_lshrrev_b32 v{I}, 6, v0", f"s_mov_b32 s10, {hex(SZ['x'])}", "s_mov_b32 s11, 0x20000",
    f"v_readfirstlane_b32 s{WV}, v{I}", f"v_and_b32 v{I}, 15, v{L}", f"v_lshrrev_b32 v{G}, 4, v{L}", f"v_mul_u32_u24 v9, 20, v{L}")
seq("s_and_b32 s4, s2, 7", "s_lshl_b32 s4, s4, 2", "s_bfe_u32 s5, s2, 0x20005", "s_add_u32 s4, s4, s5", "s_bfe_u32 s5, s2, 0x20003",
    "s_mul_i32 s6, s5, 160", f"s_mul_i32 s7, s{WV}, 40", "s_add_u32 s51, s6, s7")
seq(f"s_mov_b32 s14, {hex(SZ['wq'])}", "s_mov_b32 s15, 0x20000", "s_lshr_b32 s6, s2, 7", "s_mul_i32 s7, s6, 5", "s_add_u32 s7, s7, s51",
    "s_lshl_b32 s54, s7, 13", "s_lshl_b32 s53, s4, 8", "s_add_u32 s54, s54, s53",
    f"v_mul_u32_u24 v11, {10*8192}, v{G}", f"v_lshl_add_u32 v11, v{I}, 4, v11")
lgk(0)
a("buffer_load_dwordx4 v[212:215], v9, s[8:11], 0 offen"); a("buffer_load_dword v216, v9, s[8:11], 0 offen offset:16")
if OPT["xbar"]: a("s_barrier")
for s in range(5):
    a(f"buffer_load_dwordx4 v[{64+4*s}:{67+4*s}], v11, s[12:15], s54 offen {NT}")
    if s < 4: a("s_add_u32 s54, s54, 8192")
a(f"s_load_dword s{E}, s[24:25], {EP}")
seq(f"s_mov_b32 s26, {hex(SZ['ws'])}", "s_mov_b32 s27, 0x20000", f"s_mov_b32 s18, {hex(SZ['wuk'])}", "s_mov_b32 s19, 0x20000")
seq("s_lshl_b32 s6, s6, 2", "s_add_u32 s6, s6, s5", "s_lshl_b32 s6, s6, 9", "s_lshl_b32 s7, s4, 12", "s_add_u32 s6, s6, s7",
    f"s_add_u32 s54, s6, {QPA}", f"s_add_u32 s55, s6, {QPB}", f"s_lshl_b32 s7, s{WV}, 7", "s_add_u32 s6, s54, s7",
    "s_mov_b64 exec, 1", "buffer_load_dword v217, v9, s[24:27], s6 offen", "s_mov_b64 exec, -1")
seq(f"v_and_b32 v9, 2, v{G}", f"v_xor_b32 v9, v9, v{I}", "v_lshlrev_b32 v9, 4, v9", f"v_lshl_add_u32 v36, v{G}, 13, v9")
for k in range(1, 4):
    a(f"v_xor_b32 v{36+k}, {64*k}, v36")
seq("s_lshl_b32 s6, s5, 7", f"s_lshl_b32 s7, s{WV}, 5", "s_add_u32 s6, s6, s7", "s_lshl_b32 s6, s6, 13", "s_add_u32 s62, s6, s53",
    "s_cmp_ge_u32 s2, 128", "s_cselect_b32 s62, 0x7000000, s62", "s_cselect_b64 s[30:31], -1, 0", "s_cselect_b32 s63, 15, 13", f"s_lshl_b32 s63, s{WV}, s63")
YR_ = 0 if OPT["nockv"] else OPT["yreal"]
seq(f"s_mov_b32 s22, {hex(SZ['ckv'])}", "s_mov_b32 s23, 0x20000",
    "s_and_b32 s61, s2, 7", "s_bfe_u32 s6, s2, 0x30004", "s_lshl_b32 s6, s6, 3", "s_or_b32 s61, s61, s6", "s_bfe_u32 s58, s2, 0x10003",
    "s_lshl_b32 s56, s61, 17", f"s_lshl_b32 s57, s{WV}, 15", "s_add_u32 s56, s56, s57",
    f"s_mul_i32 s60, s58, {16384*OPT['swap']}", "s_add_u32 s56, s56, s60")
if YR_:
    for k in range(8 - YR_, 8):
        r = k - (8 - YR_)
        seq(f"v_xor_b32 v9, {2*r}, v{L}", "v_lshlrev_b32 v9, 4, v9", f"v_cndmask_b32 v{220+k}, v{36+(k&3)}, v9, s[30:31]")
    seq("s_cmp_ge_u32 s2, 128", "s_cselect_b64 s[16:17], s[20:21], s[16:17]", "s_cselect_b32 s18, s22, s18", "s_cselect_b32 s65, 10, 15", "s_lshl_b32 s65, 1, s65")
nuk = [0]
def ukdma(n):
    for _ in range(n):
        k = nuk[0]
        if k == 8: return
        if YR_ and k == 8 - YR_:
            seq("s_cmp_ge_u32 s2, 128", "s_cselect_b32 s62, s56, s62", "s_cselect_b32 s63, s57, s63")
        seq("s_mov_b32 m0, s63", "s_add_u32 s63, s63, 1024", f"buffer_load_dwordx4 v{220+k if k >= 8 - YR_ else 36+(k&3)}, s[16:19], s62 offen {NT} lds")
        if k < 7: a(f"s_add_u32 s62, s62, " + ("s65" if YR_ else str(4*8192)))
        nuk[0] += 1
ukdma(OPT["ukpre"])
a(f"s_mov_b32 s{BUD}, {OPT['budget']}")
masks(9, 10)
seq(f"v_and_b32 v9, 1, v{G}", "v_lshlrev_b32 v9, 4, v9", f"v_lshl_add_u32 v14, v{I}, 5, v9",
    f"s_lshl_b32 s7, s{WV}, 9", "v_add_u32 v15, s7, v14", f"v_add_u32 v12, {R0}, v15",
    f"v_lshlrev_b32 v204, 4, v{L}", f"v_add_u32 v13, {R0}, v204",
    "s_lshl_b32 s6, s5, 2", f"s_add_u32 s6, s6, s{WV}", "s_lshl_b32 s6, s6, 4", f"v_lshl_add_u32 v10, v{G}, 2, s6")
raw, own, U, m, v, t = 212, 40, 48, 30, 32, 34
vmw(6 + nuk[0])
stamp(1)
for k in range(5): a(f"ds_bpermute_b32 v{own+k}, v10, v{raw+k}")
for k in range(5):
    a(f"v_lshlrev_b32 v{U+2*k}, 16, v{raw+k}"); a(f"v_and_b32 v{U+2*k+1}, 0xffff0000, v{raw+k}")
pk("add", m, U, U+2); pk("add", v, U+4, U+6); pk("add", m, m, U+8); pk("add", m, m, v)
a(f"v_add_f32 v{m}, v{m}, v{m+1}")
wave_allreduce(a, "v_add_f32", m, m+1)
ukdma(OPT["ukln"][0])
a(f"v_mul_f32 v{m}, {f32bits(-1/640)}, v{m}")
for k in range(5):
    pk("add", U+2*k, U+2*k, m, "op_sel_hi:[1,0]")
pk("mul", v, U, U)
for k in range(1, 5):
    a(f"v_pk_fma_f32 v[{v}:{v+1}], v[{U+2*k}:{U+2*k+1}], v[{U+2*k}:{U+2*k+1}], v[{v}:{v+1}]")
a(f"v_add_f32 v{v}, v{v}, v{v+1}")
wave_allreduce(a, "v_add_f32", v, v+1)
ukdma(OPT["ukln"][1])
a(f"v_mul_f32 v{v}, {f32bits(1/640)}, v{v}")
bfround(m); bfround(v)
a(f"v_add_f32 v{v}, {f32bits(1e-5)}, v{v}")
bfround(v)
a(f"v_sqrt_f32 v{v}, v{v}")
lgk(0)
for k in range(5):
    a(f"v_lshlrev_b32 v{U+2*k}, 16, v{own+k}"); a(f"v_and_b32 v{U+2*k+1}, 0xffff0000, v{own+k}")
bfround(v)
a(f"v_rcp_f32 v{v}, v{v}")
ukdma(OPT["ukln"][2])
for k in range(5):
    pk("add", U+2*k, U+2*k, m, "op_sel_hi:[1,0]")
for k in range(5):
    a(f"v_cvt_pk_bf16_f32 v{t}, v{U+2*k}, v{U+2*k+1}")
    a(f"v_lshlrev_b32 v{U+2*k}, 16, v{t}"); a(f"v_and_b32 v{U+2*k+1}, 0xffff0000, v{t}")
    pk("mul", U+2*k, U+2*k, v, "op_sel_hi:[1,0]")
    a(f"v_cvt_pk_bf16_f32 v{XD+2*k}, v{U+2*k}, v{U+2*k}"); a(f"v_cvt_pk_bf16_f32 v{XD+2*k+1}, v{U+2*k+1}, v{U+2*k+1}")
stamp(2)
for s in range(5):
    a(f"v_cndmask_b32 v{52+s}, v{XD+s}, v{XD+5+s}, s[30:31]")
selA(40, 52)
for s in range(5):
    if s < 4: selA(40 + 4*((s+1) & 1), 52 + s + 1)
    vmw(5 - s + nuk[0])
    mfma(48, vr(40 + 4*(s & 1), 4), vr(64+4*s, 4), "0" if s == 0 else None)
    if s < 4: ukdma(2)
assert nuk[0] == 8
seq(f"s_add_u32 s{E}, s{E}, {hex(GOLD)}", f"s_lshl_b32 s59, s{E}, 2", f"v_mov_b32 v211, s{E}", "s_nop 4", "ds_write_b128 v12, v[48:51]")
stamp(3)
lgk(0)
a("s_barrier")
def qp_pub():
    a("s_mov_b32 exec_hi, 0")
    for w in range(4):
        a(f"ds_read_b128 v[{64+4*w}:{67+4*w}], v13 offset:{512*w}")
    lgk(0)
    sum4x4(60, 64)
    tag(range(60, 64))
    a("buffer_store_dwordx4 v[60:63], v204, s[24:27], s54 offen")
    a("s_mov_b32 exec_hi, -1")
only_wave0(qp_pub)
def qp_B():
    only_wave0(lambda: seq("s_mov_b32 exec_hi, 0", "buffer_store_dwordx4 v[60:63], v204, s[24:27], s55 offen sc1", "s_mov_b32 exec_hi, -1"))
a("s_cmp_ge_u32 s2, 128"); a("s_cbranch_scc1 L_Y")

UKL = 0
UVL = 65536
QB = 32768
QG = QB + 1024
AL = QG + 256
ML = AL + 256
R1 = ML + 64
RG = R1 + 2048
FR = RG + 6144
PF = 0 if OPT["nockv"] else OPT["pf"]
load_srd(a, 32, "wuv"); load_srd(a, 12, "wg"); load_srd(a, 28, "wu"); load_srd(a, 36, "out")
a(f"s_add_u32 s52, s56, {(16-PF)*1024}")
pfl = [f"buffer_load_dwordx4 v[{96+4*k}:{99+4*k}], v204, s[20:23], s52 offen offset:{1024*k}" for k in range(PF)]
def pf_emit(n):
    for _ in range(n):
        if pfl: a(pfl.pop(0))
seq(f"v_lshlrev_b32 v205, 3, v{L}", "s_lshl_b32 s6, s4, 12", f"s_add_u32 s56, s6, {QPA}", f"s_add_u32 s57, s6, {QPB}",
    f"v_and_b32 v9, 7, v{I}", "v_lshlrev_b32 v9, 1, v9", f"v_xor_b32 v9, v9, v{G}", "v_lshlrev_b32 v9, 4, v9",
    f"v_lshl_add_u32 v9, v{I}, 9, v9", f"s_lshl_b32 s7, s{WV}, 13", "v_add_u32 v200, s7, v9")
for s in range(1, 4):
    a(f"v_xor_b32 v{200+s}, {64*s}, v200")
seq(f"s_lshl_b32 s7, s{WV}, 8", f"v_lshl_add_u32 v206, v{L}, 2, s7", f"v_lshl_add_u32 v207, v{G}, 4, s7",
    f"s_lshl_b32 s7, s{WV}, 6", f"v_lshl_add_u32 v208, v{I}, 2, s7",
    f"v_lshlrev_b32 v209, 2, v{L}", f"v_lshlrev_b32 v210, 12, v{L}",
    "s_lshl_b32 s6, s4, 2", "s_add_u32 s58, s6, s5",
    "s_lshl_b32 s6, s58, 8", f"s_add_u32 s60, s6, {QA}", "s_lshl_b32 s6, s58, 6", f"s_add_u32 s61, s6, {QC}",
    "s_lshl_b32 s6, s4, 7", f"s_add_u32 s64, s6, {FL2}")
UVTR = OPT["uvtr"]
seq(f"v_lshrrev_b32 v12, 3, v{I}", f"v_and_b32 v13, 7, v{I}",
    f"v_lshl_add_u32 v9, v{G}, 1, v12", f"v_mul_u32_u24 v9, {5*3456}, v9", "v_lshl_add_u32 v16, v13, 4, v9",
    "s_mul_i32 s6, s51, 3456", "s_lshl_b32 s7, s4, 7", "s_add_u32 s48, s6, s7",
    "s_lshl_b32 s6, s5, 7", f"s_lshl_b32 s7, s{WV}, 2", "s_add_u32 s6, s6, s7", "s_lshl_b32 s6, s6, 13", "s_add_u32 s49, s6, s53")
if UVTR:
    seq(f"v_and_b32 v9, 1, v{G}", "v_lshlrev_b32 v9, 3, v9", f"v_xor_b32 v9, v9, v{I}", "v_lshlrev_b32 v9, 4, v9", f"v_lshl_add_u32 v36, v{G}, 13, v9")
    for k in range(1, 4): a(f"v_xor_b32 v{36+k}, {32*k}, v36")
    seq(f"s_lshl_b32 s63, s{WV}, 13", f"s_add_u32 s63, s63, {UVL}")
else:
    seq(f"v_lshlrev_b32 v9, 13, v{G}", f"v_lshl_add_u32 v17, v{I}, 4, v9")
seq("s_lshl_b32 s6, s4, 11", "s_lshl_b32 s7, s5, 9", "s_add_u32 s7, s7, s6", f"s_add_u32 s65, s7, {GPA}", f"s_add_u32 s67, s7, {GPB}",
    "v_cmp_eq_u32 vcc, 1, v12", f"v_lshrrev_b32 v9, 1, v{G}", f"v_and_b32 v10, 1, v{G}")
for s in range(5):
    a(f"v_cndmask_b32 v{XD+s}, v{XD+s}, v{XD+5+s}, vcc")
seq("v_cmp_eq_u32 vcc, v9, v12",
    "v_lshlrev_b32 v9, 5, v13", "v_lshl_add_u32 v9, v10, 4, v9", "v_lshl_add_u32 v9, v12, 9, v9",
    f"s_lshl_b32 s7, s{WV}, 10", "v_add_u32 v9, s7, v9", "v_add_u32 v11, 4096, v204", "v_cndmask_b32 v19, v11, v9, vcc")
seq(f"v_lshlrev_b32 v18, 9, v{I}", "s_lshr_b32 s6, s4, 4", "s_lshl_b32 s6, s6, 15", "s_and_b32 s7, s4, 15", "s_lshl_b32 s7, s7, 5", "s_add_u32 s6, s6, s7",
    f"s_lshl_b32 s7, s{WV}, 13", "s_add_u32 s6, s6, s7", f"s_add_u32 s66, s6, {REC}",
    f"v_lshlrev_b32 v17, 7, v{L}", "s_lshr_b32 s6, s2, 3", "s_lshl_b32 s6, s6, 2", f"s_add_u32 s6, s6, s{WV}", "s_lshl_b32 s6, s6, 8",
    f"s_add_u32 s42, s6, {FLY}", "s_and_b32 s7, s2, 7", "s_lshl_b32 s7, s7, 14", "s_add_u32 s7, s7, s6", f"s_add_u32 s43, s7, {FLS}")
def x_warm():
    seq("s_mov_b64 exec, 0xffff", "buffer_load_dword v32, v18, s[24:27], s66 offen sc1", "s_mov_b64 exec, 3",
        "buffer_load_dword v32, v17, s[24:27], s42 offen sc1", "buffer_load_dword v32, v17, s[24:27], s43 offen sc1", "s_mov_b64 exec, -1")
seq("s_cmp_ge_u32 s4, 27", "s_cselect_b32 s48, 0x7000000, s48")
gul = []
for s in range(5):
    gul.append([f"buffer_load_dwordx4 v[{160+8*s}:{163+8*s}], v16, s[12:15], s48 offen {NT}"])
    gul.append([f"buffer_load_dwordx4 v[{164+8*s}:{167+8*s}], v16, s[28:31], s48 offen {NT}"] + (["s_add_u32 s48, s48, 3456"] if s < 4 else []))
GUE = 0 if OPT["nolate"] else OPT["gue"]
gue, gul = gul[:GUE], gul[GUE:]
def gue_emit(n):
    for _ in range(n):
        if gue: seq(*gue.pop(0))
a("s_waitcnt vmcnt(1) lgkmcnt(0)")
seq(f"s_cmp_eq_u32 s{WV}, 0", "s_cbranch_scc1 X_UKW", "s_waitcnt vmcnt(0)"); a.label("X_UKW")
for T in range(2):
    for s in range(4):
        a(f"ds_read_b128 v[{128+16*T+4*s}:{131+16*T+4*s}], v{200+s} offset:{UKL+256*T}")
stamp(4); fstamp(0, 3)
def iss(k):
    for p in range(8):
        a(f"buffer_load_dwordx2 v[{64+2*p}:{65+2*p}], v205, s[24:27], s{56+k} offen offset:{512*p} sc1")
dual_poll(iss, lambda: tagcheck(list(range(64, 80)), 9), qp_B)
stamp(5); fstamp(1, 3)
if OPT["fl2pos"] == 0: quad_flag(64, 210)
for k in (64, 68, 72, 76): pk("add", k, k, k+2)
pk("add", 64, 64, 68); pk("add", 72, 72, 76); pk("add", 64, 64, 72)
a("v_cvt_pk_bf16_f32 v64, v64, v65")
a(f"ds_write_b32 v206, v64 offset:{QB}")
pf_emit(2); gue_emit(2); fstamp(2, 3)
lgk(0)
fstamp(3, 3)
for s in range(4):
    a(f"ds_read_b128 v[{64+4*s}:{67+4*s}], v207 offset:{QB+64*s}")
pf_emit(2); gue_emit(2)
if OPT["fl2pos"] == 1: quad_flag(64, 210)
for s in range(4):
    lgk(3-s)
    for T in range(2):
        mfma(48 + 4*T, vr(64+4*s, 4), vr(128+16*T+4*s, 4), "0" if s == 0 else None)
fstamp(4, 3)
seq("s_nop 7", "v_cvt_pk_bf16_f32 v56, v48, v52", f"ds_write_b32 v208, v56 offset:{QG}")
gue_emit(2)
assert not gue
if OPT["fl2pos"] == 2: quad_flag(64, 210)
fstamp(5, 3)
lgk(0)
a("s_barrier")
fstamp(6, 3)
def qa_pub():
    seq("s_mov_b64 exec, 0xffff", f"ds_read_b128 v[64:67], v204 offset:{QG}")
    lgk(0)
    seq("buffer_store_dwordx4 v[64:67], v204, s[24:27], s60 offen sc1", f"v_add3_u32 v68, v64, v65, s{E}", "v_add3_u32 v68, v66, v67, v68",
        "buffer_store_dword v68, v209, s[24:27], s61 offen sc1", "s_mov_b64 exec, -1")
only_wave0(qa_pub)
if OPT["fl2pos"] == 3: quad_flag(64, 210)
stamp(6); fstamp(7, 3)
qp_B()
def late_gate():
    lg, lh = newlab('LG'), newlab('LH')
    if OPT["lg2"]:
        seq(f"s_cmp_lg_u32 s{WV}, 1", f"s_cbranch_scc1 {lh}", "s_lshl_b32 s7, s2, 7", f"s_add_u32 s62, s7, {LG}", f"s_mov_b32 s50, {OPT['lg2']}", "s_mov_b64 exec, 1")
        a.label(lg)
        seq("buffer_load_dword v10, v204, s[24:27], s62 offen sc1", "s_sub_u32 s50, s50, 1", "s_cselect_b32 s6, 0, -1", "s_waitcnt vmcnt(0)",
            f"v_cmp_ne_u32 vcc, s{E}, v10", "s_and_b32 vcc_lo, vcc_lo, s6", f"s_cbranch_vccnz {lg}", "s_mov_b64 exec, -1")
        a.label(lh)
        a("s_barrier")
    stamp(14)
uv = []
for s in range(8):
    if UVTR: ld = ["s_mov_b32 m0, s63", "s_add_u32 s63, s63, 1024", f"buffer_load_dwordx4 v{36+(s&3)}, s[32:35], s49 offen {NT} lds"]
    else: ld = [f"buffer_load_dwordx4 v[{128+4*s}:{131+4*s}], v17, s[32:35], s61 offen {NT}"]
    uv.append(ld + ([f"s_add_u32 s49, s49, {16*8192}"] if s < 7 else []))

def emit_loads(loads):
    W = OPT["lw"]
    for k, ld in enumerate(loads):
        if k == min(OPT["pregate"], len(loads) - 1): late_gate()
        seq(*ld)
        if W and W - 1 <= k < len(loads) - 1: vmw(W - 1)
if not OPT["nolate"]:
    a("s_cmp_ge_u32 s4, 27"); a("s_cbranch_scc1 X_NOG")
    UF = OPT["uvfirst"]
    emit_loads(uv + gul if UF else gul + uv)
    x_warm()
    for s in range(5):
        selA(40 + 4*(s & 1), XD + s)
        vmw(3 + (0 if UF else 8) + 8 - 2*s)
        a("s_nop 0")
        mfma(48, vr(40 + 4*(s & 1), 4), vr(160+8*s, 4), "0" if s == 0 else None)
        mfma(52, vr(40 + 4*(s & 1), 4), vr(164+8*s, 4), "0" if s == 0 else None)
    seq("s_nop 7", f"ds_write_b128 v19, v[48:51] offset:{RG}", f"ds_write_b128 v19, v[52:55] offset:{RG+256}")
    stamp(7)
    lgk(0)
    a("s_barrier")
    def gp_pub():
        a("s_mov_b32 exec_hi, 0")
        for p in range(8):
            a(f"ds_read_b128 v[{64+4*p}:{67+4*p}], v204 offset:{RG+512*p}")
        lgk(0)
        sum4x4(64, 64); sum4x4(80, 80)
        pk("add", 64, 64, 80); pk("add", 66, 66, 82)
        tag(range(64, 68))
        seq("buffer_store_dwordx4 v[64:67], v204, s[24:27], s65 offen", "buffer_store_dwordx4 v[64:67], v204, s[24:27], s67 offen sc1", "s_mov_b32 exec_hi, -1")
    only_wave0(gp_pub)
    a("s_branch X_LD")
    a.label("X_NOG")
    emit_loads(uv)
    x_warm()
    a.label("X_LD")
seq(f"v_lshlrev_b32 v10, 10, v{G}", f"v_lshl_add_u32 v10, v{I}, 4, v10",
    f"v_lshlrev_b32 v11, 8, v{G}", f"v_lshl_add_u32 v11, v{I}, 2, v11",
    "s_lshl_b32 s6, s58, 2", f"s_add_u32 s6, s6, s{WV}", "s_lshl_b32 s7, s6, 12", f"s_add_u32 s55, s7, {OP}",
    "s_lshl_b32 s7, s6, 10", f"s_add_u32 s56, s7, {OC}",
    f"s_lshl_b32 s7, s{WV}, 6", f"v_lshl_add_u32 v12, v{I}, 2, s7", f"v_lshl_add_u32 v13, v{G}, 4, s7",
    f"s_lshl_b32 s7, s{WV}, 2", "v_mov_b32 v16, s7", "v_mov_b32 v19, 0",
    f"s_lshl_b32 s7, s{WV}, 7", f"v_lshl_add_u32 v20, v{G}, 5, s7",
    "s_lshl_b32 s7, s6, 9", f"s_add_u32 s60, s7, {CXA}", f"s_add_u32 s61, s7, {CXB}")
if UVTR:
    seq(f"v_bfe_u32 v9, v{L}, 2, 2", f"v_and_b32 v21, 1, v{G}", "v_lshl_add_u32 v21, v21, 2, v9", "v_lshlrev_b32 v21, 5, v21",
        "v_lshl_add_u32 v21, v9, 10, v21", f"v_lshl_add_u32 v21, v{G}, 8, v21", f"v_and_b32 v9, 3, v{L}", "v_lshl_add_u32 v21, v9, 3, v21",
        f"s_lshl_b32 s7, s{WV}, 13", f"s_add_u32 s7, s7, {UVL}", "v_add_u32 v220, s7, v21")
    for T in range(1, 8): a(f"v_xor_b32 v{220+T}, {32*T}, v220")
    seq("s_mov_b32 s42, 0xffff0000", "s_mov_b32 s43, 0", "s_mov_b32 s44, 0", "s_mov_b32 s45, 0xffff", "s_mov_b32 s46, 0", "s_mov_b32 s47, 0xffff0000")
seq("v_lshlrev_b32 v228, 1, v0", "s_lshl_b32 s12, s2, 5", "buffer_load_ushort v235, v228, s[8:11], s12 offen",
    "v_and_b32 v9, 3, v0", "v_lshrrev_b32 v21, 2, v0", "v_lshlrev_b32 v233, 4, v9",
    "v_mul_u32_u24 v229, 2560, v21", "v_add_u32 v229, v229, v233", "v_add_u32 v230, 64, v21",
    "v_min_u32 v230, 107, v230", "v_mul_u32_u24 v230, 2560, v230", "v_add_u32 v230, v230, v233", "v_cmp_gt_u32 s[18:19], 44, v21",
    f"s_lshl_b32 s7, s{WV}, 4", f"v_lshl_add_u32 v231, v{G}, 6, v{I}", "v_add_u32 v231, s7, v231",
    "v_min_u32 v232, 107, v231", "v_lshlrev_b32 v232, 7, v232")
if OPT["fsall"]: a("v_lshlrev_b32 v231, 7, v231")
else: seq(f"v_lshrrev_b32 v231, 2, v{L}", "v_lshl_add_u32 v231, v231, 4, v9", f"s_lshl_b32 s7, s{WV}, 2", "v_add_u32 v231, s7, v231", "v_lshlrev_b32 v231, 9, v231")
seq("s_and_b32 s6, s2, 7", "s_lshl_b32 s6, s6, 14", f"s_add_u32 s13, s6, {FLS}",
    "s_lshl_b32 s6, s2, 6", f"s_add_u32 s14, s6, {YP}", f"s_add_u32 s15, s6, {SP}", f"s_add_u32 s16, s15, {64*2560}", f"s_mov_b32 s17, {FLY}",
    f"v_and_b32 v9, 1, v{G}", "v_lshlrev_b32 v9, 3, v9", f"v_lshrrev_b32 v21, 1, v{G}", "v_lshl_add_u32 v9, v21, 2, v9", "v_add_u32 v233, v233, v9",
    f"s_lshl_b32 s7, s{WV}, 6", "v_add_u32 v233, s7, v233", "v_lshlrev_b32 v234, 2, v0")
def y_fetch():
    seq("buffer_load_dwordx4 v[236:239], v229, s[24:27], s14 offen sc1", "buffer_load_dwordx4 v[240:243], v230, s[24:27], s14 offen sc1")
def y_early(pos):
    if OPT["ypos"] == pos and not OPT["nolate"]:
        l = newlab("YE")
        seq("s_cmp_ge_u32 s2, 40", f"s_cbranch_scc1 {l}")
        y_fetch()
        a.label(l)
stamp(8)
if OPT["stamps"] == 1:
    vmw(0); stamp(15)
if OPT["xpf"] and not OPT["nolate"]:
    seq(f"v_mul_u32_u24 v9, 1280, v{G}", f"v_lshl_add_u32 v9, v{I}, 4, v9",
        "s_lshl_b32 s6, s58, 5", f"s_lshl_b32 s7, s{WV}, 2", "s_add_u32 s6, s6, s7", "s_mul_i32 s62, s6, 1280")
    for rnd in range(OPT["xpf"]):
        seq("s_mov_b64 exec, 0xffff", "buffer_load_dwordx4 v[32:35], v18, s[24:27], s66 offen sc1", "s_waitcnt vmcnt(0)",
            f"v_cmp_ne_u32 vcc, s{E}, v34", "s_cbranch_vccz X_RD", "s_mov_b64 exec, -1")
        for cb in range(5):
            a(f"buffer_load_dwordx4 v[{160+4*cb}:{163+4*cb}], v9, s[16:19], s62 offen offset:{256*cb}")
        if rnd == 0: a(f"s_add_u32 s62, s62, {16*1280}")
a("s_mov_b64 exec, 0xffff")
a.label("X_RP")
a("buffer_load_dwordx4 v[32:35], v18, s[24:27], s66 offen sc1")
spend("X_RD")
vmw(0)
seq(f"v_cmp_ne_u32 vcc, s{E}, v34", "s_cbranch_vccnz X_RP")
a.label("X_RD")
fstamp(0, 2)
a("s_mov_b64 exec, -1")
stamp(9)
def iss3():
    for s in range(4):
        a(f"buffer_load_dwordx4 v[{64+4*s}:{67+4*s}], v10, s[24:27], s55 offen offset:{256*s} sc1")
    for s in range(4):
        a(f"buffer_load_dword v{80+s}, v11, s[24:27], s56 offen offset:{64*s} sc1")
if OPT["fpos"] == 0: iss3()
a("s_mov_b64 exec, 0xffff")
a("v_mov_b32 v36, v32")
for ror in (8, 4, 2, 1):
    a("s_nop 1"); a(f"v_max_f32_dpp v36, v36, v36 row_ror:{ror} row_mask:0xf bank_mask:0xf")
seq("v_sub_f32 v32, v32, v36", "v_exp_f32 v32, v32", f"ds_write_b32 v16, v36 offset:{ML}", "v_mul_f32 v37, v32, v33",
    "v_cvt_pk_bf16_f32 v32, v32, v32", f"ds_write_b32 v12, v32 offset:{AL}")
for ror in (8, 4, 2, 1):
    a("s_nop 1"); a(f"v_add_f32_dpp v37, v37, v37 row_ror:{ror} row_mask:0xf bank_mask:0xf")
a(f"ds_write_b32 v16, v37 offset:{ML+16}")
a("s_mov_b64 exec, -1")
lgk(0)
a(f"ds_read_b128 v[32:35], v13 offset:{AL}")
a("s_barrier")
a(f"ds_read_b128 v[40:43], v19 offset:{ML}"); a(f"ds_read_b128 v[44:47], v19 offset:{ML+16}")
if OPT["fpos"] == 1: iss3()
lgk(2)
for s in range(4):
    selA(96 + 4*s, 32 + s)
lgk(0)
if UVTR:
    for T in range(8):
        for hf in range(2):
            a(f"ds_read_b64_tr_b16 v[{128+4*T+2*hf}:{129+4*T+2*hf}], v{220+T} offset:{4096*hf}")
if OPT["fpos"] == 2: iss3()
a("v_max3_f32 v36, v40, v41, v42"); a("v_max_f32 v36, v36, v43")
for w in range(4): a(f"v_sub_f32 v{40+w}, v{40+w}, v36")
for w in range(4): a(f"v_exp_f32 v{40+w}, v{40+w}")
a("s_nop 0")
pk("mul", 44, 44, 40); pk("mul", 46, 46, 42); pk("add", 44, 44, 46); a("v_add_f32 v36, v44, v45")
seq("v_rcp_f32 v36, v36", "s_nop 0")
pk("mul", 24, 40, 36, "op_sel_hi:[1,0]"); pk("mul", 26, 42, 36, "op_sel_hi:[1,0]")
fstamp(1, 2)
a.label("X_OP")
vmw(0)
fstamp(2, 2)
for s in range(4):
    mfma(48, vr(96+4*s, 4), vr(64+4*s, 4), "0" if s == 0 else None)
cwcheck(64, 80, 38, 39)
a("s_cbranch_vccz X_OD")
spend("X_OD")
iss3()
a("s_branch X_OP")
a.label("X_OD")
a(f"ds_write_b128 v15, v[48:51] offset:{R1}")
y_early(1)
stamp(10)
fstamp(3, 2)
lgk(0)
a("s_barrier")
fstamp(4, 2)
for p in range(4):
    a(f"ds_read_b128 v[{64+8*p}:{67+8*p}], v20 offset:{R1+512*p}"); a(f"ds_read_b128 v[{68+8*p}:{71+8*p}], v20 offset:{R1+512*p+16}")
for p in range(4):
    lgk(6 - 2*p)
    f = 24 + (p & 2)
    for k in range(0, 8, 2):
        if p == 0: a(f"v_pk_mul_f32 v[{64+k}:{65+k}], v[{64+k}:{65+k}], v[{f}:{f+1}] op_sel_hi:[1,0]")
        else: a(f"v_pk_fma_f32 v[{64+k}:{65+k}], v[{64+8*p+k}:{65+8*p+k}], v[{f}:{f+1}], v[{64+k}:{65+k}] " + ("op_sel_hi:[1,0,1]" if p % 2 == 0 else "op_sel:[0,1,0]"))
fstamp(5, 2)
assert UVTR
for k in range(4): a(f"v_cvt_pk_bf16_f32 v{40+k}, v{64+2*k}, v{65+2*k}")
a("s_nop 1")
for T in range(8):
    mfma(96 + 4*T, vr(40, 4), vr(128+4*T, 4), "0")
fstamp(6, 2)
y_early(2)
seq("s_nop 2", "v_cndmask_b32 v60, v96, v104, s[42:43]", "v_cndmask_b32 v61, v100, v108, s[42:43]",
    "v_cndmask_b32 v60, v60, v112, s[44:45]", "v_cndmask_b32 v61, v61, v116, s[44:45]",
    "v_cndmask_b32 v60, v60, v120, s[46:47]", "v_cndmask_b32 v61, v61, v124, s[46:47]")
tag((60, 61))
seq("buffer_store_dwordx2 v[60:61], v205, s[24:27], s60 offen", "buffer_store_dwordx2 v[60:61], v205, s[24:27], s61 offen sc1")
stamp(11)
fstamp(7, 2)
a("s_cmp_ge_u32 s2, 40"); a("s_cbranch_scc1 X_FIN")
def red4(b):
    seq(f"v_permlane32_swap_b32 v{b}, v{b+1}", f"v_permlane32_swap_b32 v{b+2}, v{b+3}",
        f"v_add_f32 v{b}, v{b}, v{b+1}", f"v_add_f32 v{b+2}, v{b+2}, v{b+3}", "s_nop 1",
        f"v_permlane16_swap_b32 v{b}, v{b+2}", f"v_add_f32 v{b}, v{b}, v{b+2}")
    for ror in (8, 4):
        a("s_nop 1"); a(f"v_add_f32_dpp v{b}, v{b}, v{b} row_ror:{ror} row_mask:0xf bank_mask:0xf")
if OPT["nolate"]: a("s_branch X_YG")
if OPT["ypos"]:
    vmw(2)
    tagcheck(list(range(236, 244)), 19)
    a("s_cbranch_vccz X_YG")
a("s_mov_b32 exec_hi, 0")
hint_poll(232, 17, 19)
a("s_mov_b32 exec_hi, -1")
a.label("X_YF")
y_fetch()
spend("X_YG")
vmw(0)
tagcheck(list(range(236, 244)), 19)
a("s_cbranch_vccnz X_YF")
a.label("X_YG")
stamp(7)
for r in range(4):
    a(f"v_cndmask_b32 v{240+r}, 0, v{240+r}, s[18:19]")
pk("add", 24, 236, 240); pk("add", 26, 238, 242)
a("s_nop 1")
red4(24)
a(f"ds_write_b32 v233, v24 offset:{FR+256}")
lgk(0)
a("s_barrier")
def silu_part():
    for w in range(4):
        a(f"ds_read_b32 v{24+w}, v234 offset:{FR+256+64*w}")
    lgk(0)
    seq("v_add_f32 v24, v24, v25", "v_add_f32 v26, v26, v27", "v_add_f32 v24, v24, v26")
    bfround(24)
    seq(f"v_mul_f32 v25, {f32bits(-LOG2E)}, v24", "v_exp_f32 v25, v25", "s_nop 0", "v_add_f32 v25, 1.0, v25", "v_rcp_f32 v25, v25", "s_nop 0", "v_mul_f32 v28, v24, v25")
    bfround(28)
    a("v_lshlrev_b32 v235, 16, v235")
only_wave0(silu_part)
a("s_mov_b32 exec_hi, 0" if OPT["fsall"] else "s_mov_b64 exec, 0xff")
hint_poll(231, 13, 19)
a("s_mov_b64 exec, -1")
stamp(8); fstamp(0, 5)
a.label("X_SF")
seq("buffer_load_dwordx4 v[64:67], v229, s[24:27], s15 offen sc1", "buffer_load_dwordx4 v[68:71], v229, s[24:27], s16 offen sc1")
spend("X_SG")
vmw(0)
fstamp(1, 5)
pk("add", 20, 64, 68); pk("add", 22, 66, 70)
tagcheck(list(range(64, 72)), 19)
a("s_cbranch_vccnz X_SF")
a.label("X_SG")
fstamp(2, 5)
red4(20)
a(f"ds_write_b32 v233, v20 offset:{FR}")
stamp(12); fstamp(3, 5)
lgk(0)
a("s_barrier")
fstamp(4, 5)
seq(f"s_cmp_lg_u32 s{WV}, 0", "s_cbranch_scc1 X_FIN", "s_mov_b64 exec, 0xffff")
for w in range(4):
    a(f"ds_read_b32 v{20+w}, v234 offset:{FR+64*w}")
lgk(0)
seq("v_add_f32 v20, v20, v21", "v_add_f32 v22, v22, v23", "v_add_f32 v20, v20, v22")
bfround(20)
a("v_mul_f32 v20, v20, v28"); bfround(20)
seq("v_add_f32 v20, v20, v235", "v_cvt_pk_bf16_f32 v20, v20, v20", "buffer_store_short v20, v228, s[36:39], s12 offen",
    "s_cmp_lg_u32 s2, 0", "s_cbranch_scc1 X_FIN",
    "v_mov_b32 v9, 0", "s_mov_b64 exec, 1", f"buffer_store_dword v211, v9, s[24:27], 0 offen offset:{EP} sc1")
a.label("X_FIN")
stamp(13); fstamp(5, 5)
dump_stamps()
a("s_endpgm")

a.label("L_Y")
YR = 8192; R3 = 20480
qp_B()
seq("s_lshl_b32 s53, s60, 1", "s_sub_u32 s60, s2, 128", "s_mov_b32 s62, s58", f"s_add_u32 s56, s56, {YR_*1024}", f"s_add_u32 s57, s57, {YR_*1024}")
stamp(14)
win = OPT["ywin"]
for k in range(YR_, 32):
    if k < YR_ + 8: a(f"v_xor_b32 v{64+(k&7)}, {2*(k&7)}, v{L}"); a(f"v_lshlrev_b32 v{64+(k&7)}, 4, v{64+(k&7)}")
    seq("s_mov_b32 m0, s57", "s_add_u32 s57, s57, 1024")
    if not OPT["nockv"]: a(f"buffer_load_dwordx4 v{64+(k&7)}, s[20:23], s56 offen {NTC} lds")
    a("s_add_u32 s56, s56, 1024")
    if k == 15: a("s_sub_u32 s56, s56, s53")
    if OPT["ydiag"] and k in (7, 11, 15, 19, 23, 27): stamp({7: 4, 11: 5, 15: 6, 19: 7, 23: 8, 27: 9}[k], True)
    if k == max(7, YR_ + 3):
        load_srd(a, 12, "wd"); load_srd(a, 32, "wo")
        seq(f"v_lshlrev_b32 v19, 7, v{L}", "s_lshl_b32 s6, s62, 2", f"s_add_u32 s6, s6, s{WV}",
            "s_lshl_b32 s7, s6, 12", f"s_add_u32 s54, s7, {QA}", "s_lshl_b32 s7, s6, 10", f"s_add_u32 s55, s7, {QC}",
            "s_lshl_b32 s7, s6, 9", "s_and_b32 s6, s2, 7", "s_lshl_b32 s6, s6, 12", "s_add_u32 s7, s7, s6", f"s_add_u32 s58, s7, {FL2}",
            "s_mov_b64 exec, 0xf", "buffer_load_dword v40, v19, s[24:27], s58 offen sc1", "s_mov_b64 exec, -1",
            "s_lshl_b32 s6, s4, 13", "s_lshl_b32 s7, s5, 7", "s_add_u32 s6, s6, s7", f"s_lshl_b32 s7, s{WV}, 5", "s_add_u32 s6, s6, s7",
            f"s_add_u32 s28, s6, {CXA}", f"s_add_u32 s29, s6, {CXB}", f"v_lshlrev_b32 v57, 9, v{I}", f"v_lshl_add_u32 v57, v{G}, 3, v57",
            "buffer_load_dword v40, v57, s[24:27], s28 offen")
    if OPT["lg2"] and k == OPT["sigk"]:
        only_wave0(lambda: seq("s_lshl_b32 s7, s60, 7", f"s_add_u32 s7, s7, {LG}", "s_mov_b64 exec, 1",
                               "buffer_store_dword v211, v204, s[24:27], s7 offen", "s_mov_b64 exec, -1"))
    W = next((w for until, w in win if k < until), 0)
    if W and k < 31: vmw(W - 1)
seq("s_mov_b64 exec, 0xf", "buffer_load_dword v40, v19, s[24:27], s58 offen sc1", "s_mov_b64 exec, -1")
stamp(2)
seq("v_mov_b32 v18, v204", "v_mov_b32 v59, v211")
seq(f"v_and_b32 v9, 7, v{I}", "v_lshlrev_b32 v9, 1, v9", f"v_xor_b32 v9, v9, v{G}", "v_lshlrev_b32 v9, 4, v9", f"v_lshl_add_u32 v9, v{I}, 10, v9",
    f"s_lshl_b32 s7, s{WV}, 15", "v_add_u32 v20, s7, v9", f"v_add_u32 v24, {QL}, v9")
for s in range(1, 4):
    a(f"v_xor_b32 v{20+s}, {64*s}, v20"); a(f"v_xor_b32 v{24+s}, {64*s}, v24")
seq(f"v_bfe_u32 v9, v{L}, 2, 2", f"v_lshl_add_u32 v9, v{G}, 2, v9", "v_and_b32 v10, 7, v9", "v_lshlrev_b32 v10, 5, v10",
    "v_lshl_add_u32 v10, v9, 10, v10", f"v_and_b32 v9, 3, v{L}", "v_lshl_add_u32 v10, v9, 3, v10", f"s_lshl_b32 s7, s{WV}, 8", "v_add_u32 v28, s7, v10")
for T in range(1, 8):
    a(f"v_xor_b32 v{28+T}, {32*T}, v28")
seq(f"s_and_b32 s7, s{WV}, 1", "s_lshl_b32 s7, s7, 3", f"v_xor_b32 v9, s7, v{L}", "v_lshlrev_b32 v9, 4, v9",
    f"s_lshl_b32 s7, s{WV}, 12", f"s_add_u32 s7, s7, {QL}", "v_add_u32 v36, s7, v9")
for r in range(1, 4):
    a(f"v_xor_b32 v{36+r}, {32*r}, v36")
a(f"v_lshlrev_b32 v17, 2, v{L}")
seq(f"v_lshlrev_b32 v9, 4, v{I}", f"v_add_u32 v10, {MX}, v9", f"s_lshl_b32 s7, s{WV}, 2", "v_add_u32 v11, s7, v10",
    f"v_lshlrev_b32 v9, 6, v{I}", f"v_add_u32 v15, {LS}, v9", f"s_lshl_b32 s7, s{WV}, 4", f"v_lshl_add_u32 v16, v{G}, 2, s7", "v_add_u32 v16, v16, v15",
    f"v_add_u32 v12, {PL}, v18", f"s_lshl_b32 s7, s{WV}, 10", "v_add_u32 v13, s7, v12")
seq(f"v_lshlrev_b32 v61, 18, v{G}", f"v_lshl_add_u32 v61, v{I}, 4, v61", f"v_lshlrev_b32 v62, 16, v{G}", f"v_lshl_add_u32 v62, v{I}, 2, v62",
    "s_lshl_b32 s6, s62, 6", f"s_add_u32 s6, s6, s{WV}", "s_lshl_b32 s6, s6, 6", "s_add_u32 s6, s6, s61",
    "s_lshl_b32 s7, s6, 8", f"s_add_u32 s36, s7, {OP}", "s_lshl_b32 s7, s6, 6", f"s_add_u32 s64, s7, {OC}")
for r in range(1, 4):
    a(f"s_add_u32 s{36+r}, s36, {r << 16}"); a(f"s_add_u32 s{64+r}, s64, {r << 14}")
seq("s_lshl_b32 s6, s62, 6", "s_add_u32 s6, s6, s61", "s_lshl_b32 s6, s6, 9", f"s_add_u32 s57, s6, {REC}",
    f"v_lshlrev_b32 v63, 5, v{I}", f"v_lshl_add_u32 v63, v{G}, 4, v63",
    f"s_mov_b32 s52, {f32bits(128 ** -0.5)}", "s_mov_b32 s53, s52", f"s_mov_b32 s56, {f32bits(LOG2E)}",
    "s_lshl_b32 s6, s4, 6", "s_lshl_b32 s7, s5, 4", "s_add_u32 s6, s6, s7", f"s_lshl_b32 s7, s{WV}, 2", "s_add_u32 s6, s6, s7", "s_mul_i32 s63, s6, 1280",
    "s_lshl_b32 s6, s6, 1", "s_sub_u32 s6, s6, s7", "s_mul_i32 s30, s6, 1280", f"s_add_u32 s31, s30, {16*1280}",
    f"v_mul_u32_u24 v55, 1280, v{G}", f"v_lshl_add_u32 v55, v{I}, 4, v55",
    f"v_and_b32 v56, 7, v{I}", "v_lshlrev_b32 v56, 8, v56", f"v_lshl_add_u32 v56, v{G}, 2, v56",
    "s_lshl_b32 s6, s4, 11", "s_lshl_b32 s7, s5, 6", "s_add_u32 s6, s6, s7", f"s_lshl_b32 s7, s{WV}, 4", "s_add_u32 s6, s6, s7",
    f"s_add_u32 s48, s6, {GPA}", f"s_add_u32 s49, s6, {GPB}")
def qa_fetch():
    for r in range(4):
        a(f"buffer_load_dwordx4 v[{64+4*r}:{67+4*r}], v18, s[24:27], s54 offen offset:{1024*r} sc1")
    for r in range(4):
        a(f"buffer_load_dword v{80+r}, v17, s[24:27], s55 offen offset:{256*r} sc1")
def sa_reads(T):
    for s in range(16):
        a(f"ds_read_b128 v[{128+64*T+4*s}:{131+64*T+4*s}], v{20+(s&3)} offset:{16384*T+(s>>2)*256}")
def tr_all():
    for kg in range(4):
        if kg == 2:
            for t in range(8): a(f"v_add_u32 v{28+t}, 0x10000, v{28+t}")
        for T in range(8):
            for hf in range(2):
                off = (32*kg + 16*hf) * 1024 - (65536 if kg >= 2 else 0)
                r = 32*kg + 4*T + 2*hf
                a(f"ds_read_b64_tr_b16 a[{r}:{r+1}], v{28+T} offset:{off}")
vmw(17)
if OPT["ydiag"]: stamp(12, True)
sa_reads(0)
a("s_mov_b64 exec, 0xf")
vmw(0)
stamp(3)
seq(f"v_cmp_ne_u32 vcc, s{E}, v40", "s_mov_b64 exec, -1", "s_cbranch_vccnz Y_WAIT")
stamp(4)
qa_fetch()
a.label("Y_WAIT")
seq("s_mov_b64 s[42:43], vcc")
sa_reads(1)
a("s_barrier")
tr_all()
seq("s_cmp_eq_u64 s[42:43], 0", "s_cbranch_scc1 Y_QW", "s_mov_b64 exec, 0xf")
hint_poll(19, 58, 40)
a("s_mov_b64 exec, -1")
stamp(4)
a.label("Y_QR")
qa_fetch()
a.label("Y_QW")
def sig2():
    only_wave0(lambda: seq("s_lshl_b32 s7, s60, 7", f"s_add_u32 s7, s7, {LG}", "s_mov_b64 exec, 1",
                           "buffer_store_dword v59, v18, s[24:27], s7 offen", "s_mov_b64 exec, -1"))
if OPT["lg2"] and OPT["sigk"] == 40: sig2()
vmw(0)
for r in range(4):
    a(f"ds_write_b128 v{36+r}, v[{64+4*r}:{67+4*r}] offset:{1024*r}")
cwcheck(64, 80, 9, 40)
a("s_cbranch_vccz Y_QD")
seq(f"s_sub_u32 s{BUD}, s{BUD}, 1", f"s_cmp_lt_i32 s{BUD}, 0", "s_cbranch_scc0 Y_QR")
a.label("Y_QD")
if OPT["lg2"] and OPT["sigk"] == 41: sig2()
stamp(5)
fstamp(0, 1)
lgk(0)
a("s_barrier")
fstamp(1, 1)
dn = [] if OPT["nolate"] else [f"buffer_load_dwordx4 a[{128+4*cb}:{131+4*cb}], v55, s[12:15], s63 offen offset:{256*cb} {NT}" for cb in range(5)]
def dn_emit():
    if dn: a(dn.pop(0))
def score_ops(b):
    ops = []
    for rnd in range(2):
        for k in (0, 2): ops.append(f"v_cvt_pk_bf16_f32 v{48+k//2}, v{b+k}, v{b+k+1}")
        for k in (0, 2):
            ops.append(f"v_lshlrev_b32 v{b+k}, 16, v{48+k//2}"); ops.append(f"v_and_b32 v{b+k+1}, 0xffff0000, v{48+k//2}")
        if rnd == 0:
            for k in range(4): ops.append(f"v_mul_f32 v{b+k}, s52, v{b+k}")
    return ops
for s in range(8):
    a(f"ds_read_b128 v[{64+4*s}:{67+4*s}], v{24+(s&3)} offset:{(s>>2)*256}")
for s in range(16):
    lgk(7 if s <= 8 else 15 - s)
    mfma(40, vr(128+4*s, 4), vr(64+4*s, 4), "0" if s == 0 else None)
    if s in (8, 12): dn_emit()
    if s < 8: a(f"ds_read_b128 v[{64+4*(s+8)}:{67+4*(s+8)}], v{24+(s&3)} offset:{((s+8)>>2)*256}")
fstamp(2, 1)
t0ops = score_ops(40) + ["v_max3_f32 v50, v40, v41, v42", "v_max_f32 v50, v50, v43"]
for s in range(16):
    mfma(44, vr(192+4*s, 4), vr(64+4*s, 4), "0" if s == 0 else None)
    if s in (0, 4, 7): dn_emit()
    if s < 3: a("s_nop 1")
    elif t0ops:
        a(t0ops.pop(0))
        if t0ops and s >= 8: a(t0ops.pop(0))
assert not t0ops and not dn
fstamp(3, 1)
a("s_nop 7")
sc = score_ops(44)
sc[6:10] = ["v_pk_mul_f32 v[44:45], v[44:45], s[52:53]", "v_pk_mul_f32 v[46:47], v[46:47], s[52:53]"]
seq(*sc)
a("v_max3_f32 v50, v50, v44, v45"); a("v_max3_f32 v50, v50, v46, v47")
cross_rows(a, "v_max_f32", 50, 51)
fstamp(4, 1)
seq("v_mul_f32 v50, s56, v50", "v_ceil_f32 v50, v50")
for k in range(8):
    a(f"v_fma_f32 v{40+k}, v{40+k}, s56, -v50")
a(f"v_mul_f32 v52, {f32bits(128.0)}, v50")
for k in range(8):
    a(f"v_exp_f32 v{40+k}, v{40+k}")
a("ds_write_b32 v11, v52")
for k in range(4):
    a(f"v_cvt_pk_bf16_f32 v{48+k}, v{40+2*k}, v{41+2*k}")
a("ds_write_b128 v13, v[48:51]")
pk("add", 40, 40, 42); pk("add", 44, 44, 46); pk("add", 40, 40, 44); a("v_add_f32 v40, v40, v41")
a("ds_write_b32 v16, v40")
stamp(6)
fstamp(5, 1)
lgk(0)
fstamp(6, 1)
a("s_barrier")
fstamp(7, 1)
a("ds_read_b128 v[48:51], v10")
for kg in range(4):
    a(f"ds_read_b128 v[{64+4*kg}:{67+4*kg}], v12 offset:{1024*kg}")
for w in range(4):
    a(f"ds_read_b128 v[{80+4*w}:{83+4*w}], v15 offset:{16*w}")
a(f"s_mov_b32 s42, {f32bits(-1/128)}")
lgk(8)
seq("v_max3_f32 v52, v48, v49, v50", "v_max_f32 v52, v52, v51",
    "v_sub_f32 v40, v52, v48", "v_sub_f32 v41, v52, v49", "v_cvt_u32_f32 v44, v40", "v_cvt_u32_f32 v45, v41", "v_cvt_pk_u16_u32 v44, v44, v45")
def rescale(kg):
    sel = "op_sel_hi:[1,0]" if kg % 2 == 0 else "op_sel:[0,1]"
    return [f"v_pk_sub_u16 v{64+4*kg+k}, v{64+4*kg+k}, v{44+kg//2} {sel} clamp" for k in range(4)]
lgk(4)
seq(*rescale(0))
seq("v_sub_f32 v42, v52, v50", "v_sub_f32 v43, v52, v51")
fl = rescale(1) + ["v_cvt_u32_f32 v46, v42", "v_cvt_u32_f32 v47, v43", "v_cvt_pk_u16_u32 v45, v46, v47"] + rescale(2) + rescale(3)
fl += ["s_waitcnt lgkmcnt(0)"] + [f"v_mul_f32 v{40+w}, s42, v{40+w}" for w in range(4)] + [f"v_exp_f32 v{40+w}, v{40+w}" for w in range(4)]
for w in range(4): fl += [f"v_add_f32 v{80+4*w}, v{80+4*w}, v{81+4*w}", f"v_add_f32 v{82+4*w}, v{82+4*w}, v{83+4*w}"]
for w in range(4): fl += [f"v_add_f32 v{80+4*w}, v{80+4*w}, v{82+4*w}"]
fl += ["v_mul_f32 v53, v80, v40"] + [f"v_fmac_f32 v53, v{80+4*w}, v{40+w}" for w in range(1, 4)]
fl += ["v_mul_f32 v52, s42, v52", "v_sub_f32 v52, 0, v52", f"v_mov_b32 v54, s{E}"]
g = {}
for kg in range(3):
    for T in range(8):
        n = 1 if fl and fl[0].startswith("v_exp") else 2
        g[kg, T] = fl[:n]; fl = fl[n:]
g[3, 0] = fl
assert len(fl) <= 2, fl
cv = lambda k, r: f"v_cvt_pk_bf16_f32 v{128+4*r+k}, v{96+8*k+r}, v{100+8*k+r}"
g[3, 1] = ["s_nop 2"]; g[3, 2] = ["s_nop 2"]
g[3, 3] = [cv(0, 0), cv(0, 1), cv(0, 2)]; g[3, 4] = [cv(0, 3), "s_nop 1"]
g[3, 5] = [cv(1, 0), cv(1, 1), cv(1, 2)]; g[3, 6] = [cv(1, 3), "s_nop 1"]
g[3, 7] = [cv(2, r) for r in range(4)] + [f"v_add3_u32 v{144+r}, v{128+4*r}, v{129+4*r}, s{E}" for r in range(4)]
def rec_store():
    seq("s_mov_b32 exec_hi, 0", "buffer_store_dwordx4 v[52:55], v63, s[24:27], s57 offen sc1", "s_mov_b32 exec_hi, -1")
nm = 0
assert OPT["reck"] >= 25
for kg in range(4):
    fstamp(8 + kg, 1)
    for T in range(8):
        mfma(96 + 4*T, vr(64+4*kg, 4), ar(32*kg + 4*T, 4), "0" if kg == 0 else None)
        nm += 1
        seq(*g.get((kg, T), []))
        if nm == OPT["gpk"]: a("buffer_load_dword v58, v56, s[24:27], s48 offen sc1")
        if nm == OPT["reck"]: only_wave0(rec_store)
fstamp(12, 1)
for r in range(4):
    seq(cv(3, r), f"buffer_store_dwordx4 v[{128+4*r}:{131+4*r}], v61, s[24:27], s{36+r} offen sc1",
        f"v_add3_u32 v{144+r}, v{130+4*r}, v{131+4*r}, v{144+r}", f"buffer_store_dword v{144+r}, v62, s[24:27], s{64+r} offen sc1")
    if OPT["reck"] == 34 + r: only_wave0(rec_store)
if OPT["reck"] == 33: only_wave0(rec_store)
stamp(7)
fstamp(13, 1)
if OPT["obar"]: a("s_barrier")
seq("v_mov_b32 v211, v59", "s_lshl_b32 s58, s4, 2", "s_add_u32 s58, s58, s5", f"v_lshlrev_b32 v210, 14, v{L}",
    "s_lshl_b32 s6, s58, 7", f"s_add_u32 s65, s6, {FLS}")
def wo_loads(k0=0, k1=10, W=0):
    if OPT["nolate"]: return
    for k in range(k0, k1):
        s, cb = divmod(k, 5)
        r = 160 + 20*s + 4*cb
        if W: vmw(W - 1)
        a(f"buffer_load_dwordx4 v[{r}:{r+3}], v55, s[32:35], s{30+s} offen offset:{256*cb} {NT}")
N1, N2 = OPT["wos"]
if OPT["nolate"]: a("s_branch Y_NOF")
a("s_cmp_ge_u32 s4, 27"); a("s_cbranch_scc1 Y_NOF")
red640_setup(22, 23, 66, YP, 58)
if OPT["gpk"]:
    assert OPT["gpk"] <= min(32, OPT["reck"]), "early gate/up load must precede the record store"
    seq("s_waitcnt vmcnt(9)", f"s_cmp_eq_u32 s{WV}, 0", "s_cbranch_scc1 Y_GW", "s_waitcnt vmcnt(8)")
    a.label("Y_GW")
    a("v_mov_b32 v64, v58")
    tagcheck([58], 9)
    a("s_cbranch_vccz Y_GOK")
    if OPT["gfail"]: wo_loads(0, 10)
dual_poll(lambda k: a(f"buffer_load_dword v64, v56, s[24:27], s{48+k} offen sc1"), lambda: tagcheck([64], 9), n=OPT["pollL"])
if OPT["gpk"] and OPT["gfail"]:
    seq("s_mov_b32 s30, 0x7000000", "s_mov_b32 s31, s30", "s_mov_b32 s54, 1", "s_branch Y_GO2")
a.label("Y_GOK")
a("s_mov_b32 s54, 0")
a.label("Y_GO2")
stamp(8)
assert N1 == 0
only_wave0(lambda: seq("s_lshl_b32 s7, s58, 7", f"s_add_u32 s7, s7, {FLY}", "s_mov_b64 exec, 1",
                       "buffer_store_dword v211, v18, s[24:27], s7 offen sc1", "s_mov_b64 exec, -1"))
k0 = math.sqrt(2/math.pi); k1 = 0.044715
seq("v_add_f32_dpp v64, v64, v64 row_ror:2 row_mask:0xf bank_mask:0xf", "s_nop 1", "v_add_f32_dpp v64, v64, v64 row_ror:4 row_mask:0xf bank_mask:0xf")
bfround(64)
seq("s_nop 1", "v_mov_b32_dpp v65, v64 quad_perm:[1,1,3,3] row_mask:0xf bank_mask:0xf",
    "v_mov_b32_dpp v64, v64 quad_perm:[0,0,2,2] row_mask:0xf bank_mask:0xf",
    "v_mul_f32 v66, v64, v64", f"v_mov_b32 v67, {f32bits(k1)}", "v_fma_f32 v66, v66, v67, 1.0", "v_mul_f32 v66, v66, v64",
    f"v_mul_f32 v66, {f32bits(-2*k0*LOG2E)}, v66", "v_exp_f32 v66, v66", "s_nop 0", "v_add_f32 v66, 1.0, v66", "v_rcp_f32 v66, v66", "s_nop 0",
    "v_mul_f32 v64, v64, v66")
bfround(64)
seq("v_mul_f32 v64, v64, v65", "v_cvt_pk_bf16_f32 v64, v64, v64")
selA(40, 64)
a("s_nop 1")
for cb in range(5):
    mfma(96 + 4*cb, vr(40, 4), ar(128+4*cb, 4), "0")
seq("s_cmp_lg_u32 s54, 0", "s_cbranch_scc1 Y_WOD")
wo_loads(N1, N2)
a.label("Y_WOD")
a("s_nop 5")
for cb in range(5):
    a(f"ds_write_b128 v22, v[{96+4*cb}:{99+4*cb}] offset:{YR+512*cb}")
red640_finish(YR, 23, 66)
a("s_branch Y_O")
a.label("Y_NOF")
wo_loads(0, N2)
a.label("Y_O")
wo_loads(N2, 10, OPT["wow"])
stamp(9)
red640_setup(22, 23, 66, SP, 58)
dual_poll(lambda k: a(f"buffer_load_dwordx2 v[64:65], v57, s[24:27], s{28+k} offen sc1"), lambda: tagcheck([64, 65], 9), n=OPT["pollL"])
stamp(12); fstamp(0, 4)
if OPT["flspos"] == 0: quad_flag(65, 210, OPT["fsall"])
for ror in (8, 4, 2, 1):
    a(f"v_add_f32_dpp v64, v64, v64 row_ror:{ror} row_mask:0xf bank_mask:0xf")
    a(f"v_add_f32_dpp v65, v65, v65 row_ror:{ror} row_mask:0xf bank_mask:0xf")
    if ror > 1: a("s_nop 0")
a("v_cvt_pk_bf16_f32 v64, v64, v64"); a("v_cvt_pk_bf16_f32 v65, v65, v65")
selA(40, 64); selA(44, 65)
fstamp(1, 4)
a("s_nop 0")
for cb in range(5):
    for s in range(2):
        mfma(96 + 4*cb, vr(40+4*s, 4), vr(160+20*s+4*cb, 4), "0" if s == 0 else None)
fstamp(2, 4)
if OPT["flspos"] == 1: quad_flag(65, 210, OPT["fsall"])
a("s_nop 1")
for cb in range(5):
    if cb >= 3: a("s_nop 1")
    a(f"ds_write_b128 v22, v[{96+4*cb}:{99+4*cb}] offset:{R3+512*cb}")
fstamp(3, 4)
if OPT["flspos"] == 2: quad_flag(65, 210, OPT["fsall"])
red640_finish(R3, 23, 66)
fstamp(4, 4)
if OPT["flspos"] == 3: quad_flag(65, 210, OPT["fsall"])
stamp(13)
dump_stamps()
a.label("L_END")
a("s_endpgm")
a.label("L_CODE_END")

hdr = open("recurrent_scan__compressed_kv_cla__geglu_ffn__decode.s.ref").read().split("\n")
hdr = [l for l in hdr if l.startswith(";") and "@launch" not in l]
txt = "\n".join(hdr) + f"\n; @launch grid=(256,1,1) block=(256,1,1) lds={LDS_BYTES}\n"
txt += f'.amdgcn_target "amdgcn-amd-amdhsa--gfx950"\n.text\n.globl {NAME}\n.p2align 8\n.type {NAME},@function\n{NAME}:\n' + a.text()
txt += '.section .rodata,"a"\n.p2align 6\n' + kernel_desc(NAME, 408, 256, 102)
open(sys.argv[1], "w").write(txt)
```
